```python
import torch

def _softmax(x, axis=-1):
    return torch.softmax(x, dim=axis)
def _gelu(x):
    return torch.nn.functional.gelu(x, approximate="tanh")
def _silu(x):
    return torch.nn.functional.silu(x)
def _sigmoid(x):
    return torch.sigmoid(x)
def _layernorm(x, axis=-1, eps=1e-5):
    m = x.mean(dim=axis, keepdim=True)
    v = x.var(dim=axis, keepdim=True, unbiased=False)
    return (x - m) / torch.sqrt(v + eps)
def _scatter_add(tgt, idx, src, axis=0):
    return tgt.clone().index_add_(axis, idx, src)
def _segment_sum(src, seg, n):
    out = torch.zeros((n,) + src.shape[1:], dtype=src.dtype)
    return out.index_add_(0, seg, src)
def _pad(x, pw):
    flat = tuple(v for pair in reversed(pw) for v in pair)
    return torch.nn.functional.pad(x, flat)

kernel_name = 'gated_mix__softmax_full_mha__dense_activation_gelu__prompt'

def setup_inputs():

    _w = (lambda a: (lambda t: t.to(torch.bfloat16) if t.is_floating_point() else t)(torch.as_tensor(a)))
    def _A_setup():
        B, S, D = 1, 2048, 512
        return {
            "x": _w((lambda *s: torch.randn(*s, dtype=torch.bfloat16) * 0.05)(B, S, D)),
            "wqkv": _w((lambda *s: torch.randn(*s, dtype=torch.bfloat16) * 0.8)(D, 3 * D)),
            "wo": _w((lambda *s: torch.randn(*s, dtype=torch.bfloat16) * 0.05)(D, D)),
        }
    _A_in = _A_setup()

    def _B_setup():
        B, S, D, F = 1, 2048, 512, 1792
        return {
            "x": _w((lambda *s: torch.randn(*s, dtype=torch.bfloat16) * 0.05)(B, S, D)),
            "w1": _w((lambda *s: torch.randn(*s, dtype=torch.bfloat16) * 3.2)(D, F) * (D ** -0.5)),
            "b1": _w((lambda *s: torch.randn(*s, dtype=torch.bfloat16) * 3.2)(F) * 0.01),
            "w2": _w((lambda *s: torch.randn(*s, dtype=torch.bfloat16) * 0.8)(F, D) * (F ** -0.5)),
            "b2": _w((lambda *s: torch.randn(*s, dtype=torch.bfloat16) * 1.6)(D) * 0.01),
        }
    _B_in = _B_setup()

    return {
        "A_x": _A_in["x"],
        "A_wqkv": _A_in["wqkv"],
        "A_wo": _A_in["wo"],
        "B_x": _B_in["x"],
        "B_w1": _B_in["w1"],
        "B_b1": _B_in["b1"],
        "B_w2": _B_in["w2"],
        "B_b2": _B_in["b2"],
        "gate_w": _w((lambda *s: torch.randn(*s, dtype=torch.bfloat16) * 0.05)(512) * 16.0),
    }

def reference(A_x, A_wqkv, A_wo, B_x, B_w1, B_b1, B_w2, B_b2, gate_w):
    def _A_ref(x, wqkv, wo):
        B, S, D = x.shape
        H = 32; Dh = D // H
        qkv = (lambda x, *d: x.permute(*d))((x @ wqkv).reshape(B, S, 3, H, Dh), 2, 0, 3, 1, 4)
        q, k, v = qkv[0], qkv[1], qkv[2]
        scale = Dh ** -0.5
        scores = torch.einsum("bhqd,bhkd->bhqk", q, k) * scale
        p = _softmax(scores, axis=-1)
        o = torch.einsum("bhqk,bhkd->bhqd", p, v)
        return (lambda x, *d: x.permute(*d))(o, 0, 2, 1, 3).reshape(B, S, D) @ wo

    def _B_ref(x, w1, b1, w2, b2):
        h = torch.einsum("bsd,df->bsf", x, w1) + b1
        h = _gelu(h)
        return torch.einsum("bsf,fd->bsd", h, w2) + b2

    x = A_x
    g = _sigmoid((x * gate_w).sum(-1, keepdims=True))
    a = _A_ref(x, A_wqkv, A_wo)
    b = _B_ref(x, B_w1, B_b1, B_w2, B_b2)
    return g * a + (1 - g) * b
```

```python
import re

REG_RE = re.compile(r'^(-?)(abs\()?([vsa])(\d+|\[(\d+):(\d+)\])\)?$')

def regs_of(op):
    op = op.strip()
    if op in ('vcc',): return [('s', 106), ('s', 107)]
    if op == 'vcc_lo': return [('s', 106)]
    if op == 'vcc_hi': return [('s', 107)]
    if op == 'exec': return [('s', 126), ('s', 127)]
    if op == 'exec_lo': return [('s', 126)]
    if op == 'exec_hi': return [('s', 127)]
    if op == 'm0': return [('s', 124)]
    op = op.replace('|', '')
    m = REG_RE.match(op)
    if not m: return []
    k = m.group(3)
    if m.group(5) is not None:
        return [(k, i) for i in range(int(m.group(5)), int(m.group(6)) + 1)]
    return [(k, int(m.group(4)))]

TRANS = ('v_exp_f32', 'v_log_f32', 'v_rcp_f32', 'v_rsq_f32', 'v_sqrt_f32', 'v_sin_f32', 'v_cos_f32', 'v_exp_f16', 'v_rcp_iflag_f32')

def mfma_passes(mn):
    if '32x32x16' in mn or '32x32x8' in mn: return 8
    if '16x16x32' in mn or '16x16x16' in mn: return 4
    raise ValueError(mn)

class Ins:
    __slots__ = ('text', 'mn', 'cls', 'rd', 'wr', 'srcc', 'ab', 'passes', 'states', 'storedata', 'is_lds_dma')
    def __init__(self, text):
        self.text = text
        t = text.split(';')[0].strip()
        self.rd = []; self.wr = []; self.srcc = []; self.ab = []; self.passes = 0; self.states = 1
        self.storedata = []; self.is_lds_dma = False
        if not t or t.endswith(':') or t.startswith('.'):
            self.mn = ''; self.cls = 'label' if t.endswith(':') else 'none'; self.states = 0
            return
        parts = t.split(None, 1)
        mn = parts[0]; self.mn = mn
        rest = parts[1] if len(parts) > 1 else ''
        ops = [o.strip() for o in re.split(r',(?![^\[]*\])', rest)] if rest else []
        mods = []
        if ops:
            lp = ops[-1].split()
            if lp:
                ops[-1] = lp[0]; mods = lp[1:]
        base = mn.replace('_e32', '').replace('_e64', '').replace('_sdwa', '').replace('_dpp', '')
        if mn.startswith('v_mfma') or mn.startswith('v_smfmac'):
            self.cls = 'mfma'; self.passes = mfma_passes(mn)
            self.wr = regs_of(ops[0]); self.ab = regs_of(ops[1]) + regs_of(ops[2]); self.srcc = regs_of(ops[3])
            self.rd = self.ab + self.srcc
        elif mn.startswith('v_'):
            self.cls = 'trans' if base in TRANS else 'valu'
            if base.startswith('v_permlane') and 'swap' in base:
                self.wr = regs_of(ops[0]) + regs_of(ops[1]); self.rd = list(self.wr); self.cls = 'permlane'
            elif base == 'v_swap_b32':
                self.wr = regs_of(ops[0]) + regs_of(ops[1]); self.rd = list(self.wr)
            elif base.startswith('v_cmpx'):
                self.wr = regs_of(ops[0]) + regs_of('exec'); self.rd = sum((regs_of(o) for o in ops[1:]), [])
            elif base in ('v_add_co_u32', 'v_sub_co_u32', 'v_addc_co_u32', 'v_subb_co_u32', 'v_subrev_co_u32', 'v_mad_u64_u32', 'v_div_scale_f32'):
                self.wr = regs_of(ops[0]) + regs_of(ops[1]); self.rd = sum((regs_of(o) for o in ops[2:]), [])
            else:
                self.wr = regs_of(ops[0]); self.rd = sum((regs_of(o) for o in ops[1:]), [])
                if base in ('v_fmac_f32', 'v_pk_fmac_f16', 'v_dot2c_f32_bf16', 'v_writelane_b32') or 'UNUSED_PRESERVE' in t:
                    self.rd += self.wr
                if base in ('v_readfirstlane_b32', 'v_readlane_b32'): self.cls = 'readlane'
                if '_dpp' in mn or any(m.startswith(('quad_perm', 'row_', 'wave_')) for m in mods): self.cls = 'dpp'; self.rd += self.wr
        elif mn.startswith('ds_'):
            self.cls = 'ds'
            if mn.startswith(('ds_read', 'ds_bpermute', 'ds_permute', 'ds_swizzle')) or '_rtn' in mn:
                self.wr = regs_of(ops[0]); self.rd = sum((regs_of(o) for o in ops[1:]), [])
            else:
                self.rd = sum((regs_of(o) for o in ops), [])
        elif mn.startswith(('buffer_', 'global_', 'flat_')):
            self.cls = 'vmem'
            allm = mods + ops
            lds = 'lds' in mods or '_lds_' in mn
            if lds:
                self.is_lds_dma = True
                self.rd = sum((regs_of(o) for o in ops), []) + regs_of('m0')
            elif '_load' in mn:
                self.wr = regs_of(ops[0]); self.rd = sum((regs_of(o) for o in ops[1:]), [])
            elif mn.startswith('buffer_'):
                if mn in ('buffer_wbl2', 'buffer_inv'):
                    pass
                else:
                    self.rd = sum((regs_of(o) for o in ops), [])
                    if 'x3' in mn or 'x4' in mn: self.storedata = regs_of(ops[0])
                    if 'atomic' in mn and 'sc0' in mods: self.wr = regs_of(ops[0])
            else:
                if 'atomic' in mn and 'sc0' in mods:
                    self.wr = regs_of(ops[0]); self.rd = sum((regs_of(o) for o in ops[1:]), [])
                else:
                    self.rd = sum((regs_of(o) for o in ops), [])
                    if 'x3' in mn or 'x4' in mn: self.storedata = regs_of(ops[1])
        elif mn.startswith('s_'):
            self.cls = 'salu'
            if mn == 's_nop':
                self.states = int(ops[0], 0) + 1; self.cls = 'nop'
            elif mn.startswith(('s_cmp', 's_cbranch', 's_branch', 's_waitcnt', 's_barrier', 's_endpgm', 's_setprio', 's_sleep', 's_bitcmp')):
                self.rd = sum((regs_of(o) for o in ops), [])
                if mn.startswith(('s_cbranch', 's_branch', 's_endpgm')): self.cls = 'branch'
            elif mn.startswith(('s_load', 's_buffer_load', 's_memtime', 's_memrealtime')):
                self.cls = 'smem'; self.wr = regs_of(ops[0]); self.rd = sum((regs_of(o) for o in ops[1:]), [])
            else:
                self.wr = regs_of(ops[0]); self.rd = sum((regs_of(o) for o in ops[1:]), [])
                if 'saveexec' in mn: self.wr += regs_of('exec')
        else:
            raise ValueError("unknown instruction: " + text)

VALU_CLS = ('valu', 'trans', 'permlane', 'readlane', 'dpp')

def required(prod, cons):
    need = 0
    pw = set(prod.wr)
    if not pw and not prod.srcc and not prod.storedata: return 0
    crd = set(cons.rd); cwr = set(cons.wr)
    if prod.cls in VALU_CLS:
        vw = {r for r in pw if r[0] in 'va'}
        sw = {r for r in pw if r[0] == 's'}
        if cons.cls == 'mfma' and vw & crd: need = max(need, 2)
        if cons.cls == 'permlane' and vw & crd: need = max(need, 2)
        if cons.cls == 'dpp' and vw & crd: need = max(need, 2)
        if cons.cls == 'readlane' and vw & crd: need = max(need, 1)
        if prod.cls == 'trans' and cons.cls in VALU_CLS + ('mfma',) and cons.cls != 'trans' and vw & (crd | cwr): need = max(need, 1)
        if prod.cls == 'trans' and cons.cls in ('vmem', 'ds') and vw & crd: need = max(need, 1)
        if sw:
            if cons.cls == 'vmem' and sw & crd: need = max(need, 5)
            if cons.cls in VALU_CLS and sw & crd: need = max(need, 4 if cons.cls == 'readlane' else 2)
            if cons.cls in ('salu', 'branch', 'smem') and sw & crd: need = max(need, 1)
            ex = {('s', 126), ('s', 127)}
            if sw & ex:
                if cons.cls == 'mfma': need = max(need, 4)
                if cons.cls == 'dpp': need = max(need, 5)
                if cons.cls in ('readlane', 'permlane'): need = max(need, 4)
            if cons.mn in ('s_cbranch_vccz', 's_cbranch_vccnz', 's_cbranch_execz', 's_cbranch_execnz'): need = max(need, 1)
        if 'sdwa' in prod.mn or 'op_sel' in prod.text:
            if cons.cls in VALU_CLS and vw & (crd | cwr): need = max(need, 1)
    if prod.cls == 'mfma':
        P = prod.passes
        tbl_c = {2: 4, 4: 6, 8: 10, 16: 18}[P]; tbl_o = {2: 5, 4: 8, 8: 12, 16: 20}[P]; war = {2: 1, 4: 3, 8: 7, 16: 15}[P]
        if cons.cls == 'mfma':
            if pw & set(cons.ab): need = max(need, tbl_o)
            if pw & set(cons.srcc):
                if not (list(cons.srcc) == list(prod.wr) and cons.passes == P): need = max(need, tbl_c)
            elif pw & cwr:
                need = max(need, tbl_c)
        else:
            if pw & (crd | cwr): need = max(need, tbl_o)
            if cons.cls in VALU_CLS and set(prod.srcc) & cwr: need = max(need, war)
            if cons.cls in ('ds', 'vmem') and set(prod.srcc) & cwr: need = max(need, war)
    if prod.storedata:
        if set(prod.storedata) & cwr: need = max(need, 2 if cons.cls in VALU_CLS + ('mfma',) else 1)
    if prod.cls == 'salu' and ('s', 124) in pw and cons.is_lds_dma: need = max(need, 1)
    return need

LOOKBACK = 24

class Asm:
    def __init__(self):
        self.ins = []
        self.auto = True
        self.nops_added = 0
    def __call__(self, text):
        for line in text.split('\n'):
            line = line.strip()
            if not line: continue
            self.emit(line)
    def emit(self, line):
        i = Ins(line)
        if self.auto and i.states > 0:
            need = self._need(self.ins, i)
            while need > 0:
                n = min(need, 16)
                self.ins.append(Ins(f"s_nop {n-1}")); self.nops_added += n
                need -= n
        self.ins.append(i)
    @staticmethod
    def _need(seq, i):
        dist = 0; need = 0
        for p in reversed(seq):
            if dist >= LOOKBACK: break
            if p.states == 0: continue
            r = required(p, i)
            if r - dist > need: need = r - dist
            dist += p.states
        return need
    def label(self, name):
        self.ins.append(Ins(name + ':'))
    def check_edge(self, from_idx, to_label):
        tgt = next(k for k, x in enumerate(self.ins) if x.text.strip() == to_label + ':')
        seq = list(self.ins[max(0, from_idx - LOOKBACK * 2):from_idx + 1])
        probs = []
        cnt = 0
        for x in self.ins[tgt:]:
            if x.states == 0: continue
            n = self._need(seq, x)
            if n > 0: probs.append((x.text, n))
            seq.append(x)
            cnt += x.states
            if cnt > LOOKBACK or x.mn in ('s_branch', 's_endpgm'): break
        return probs
    def check_all_edges(self):
        probs = []
        for k, x in enumerate(self.ins):
            if x.cls == 'branch' and x.mn != 's_endpgm':
                lab = x.text.split(';')[0].split()[1]
                for p in self.check_edge(k, lab):
                    probs.append((x.text, p))
        return probs
    def text(self):
        out = []
        for x in self.ins:
            t = x.text
            out.append(t if (x.cls in ('label',) or t.startswith('.')) else '    ' + t)
        return '\n'.join(out) + '\n'

class VmTracker:
    def __init__(self): self.q = []
    def issue(self, tag): self.q.append(tag)
    def wait_for(self, tag):
        idx = max((k for k, t in enumerate(self.q) if t == tag), default=None)
        if idx is None: return None
        n = len(self.q) - 1 - idx
        self.q = self.q[idx + 1:]
        return n

def kernel_header(name):
    return f".globl {name}\n.p2align 8\n.type {name},@function\n{name}:\n"

def kernel_desc(name, vgpr, sgpr=96, accum=None):
    if accum is None: accum = (vgpr + 3) // 4 * 4
    return (f".amdhsa_kernel {name}\n  .amdhsa_next_free_vgpr {vgpr}\n  .amdhsa_next_free_sgpr {sgpr}\n"
            f"  .amdhsa_accum_offset {accum}\n  .amdhsa_group_segment_fixed_size 0\n  .amdhsa_kernarg_size 96\n"
            "  .amdhsa_user_sgpr_count 2\n  .amdhsa_user_sgpr_kernarg_segment_ptr 1\n  .amdhsa_system_sgpr_workgroup_id_x 1\n"
            ".end_amdhsa_kernel\n")
```

```python
import sys, math, struct
from asmlib import *

def f32hex(x): return "0x%08x" % struct.unpack('<I', struct.pack('<f', x))[0]

QF = 0x000000; KF = 0x200000; VF = 0x400000; XF = 0x600000; OF = 0x800000
W1F = 0xA00000; W2F = 0xC00000; WOF = 0xE00000; B1F = 0xE80000; B2F = 0xE88000; GT = 0xE90000
FLAGS = 0xEA0000; HF = 0x1000000
WS_SIZE = 0x1800000
MF = "v_mfma_f32_32x32x16_bf16"
LOG2E = 1.4426950408889634

def vr(a, n=1):
    return f"v{a}" if n == 1 else f"v[{a}:{a+n-1}]"
def sr(a, n=1):
    return f"s{a}" if n == 1 else f"s[{a}:{a+n-1}]"

def load_ptrs(a):
    a("s_load_dwordx16 s[16:31], s[0:1], 0")
    a("s_load_dwordx8 s[32:39], s[0:1], 64")
P_X, P_WQKV, P_WO, P_BX, P_W1, P_B1, P_W2, P_B2, P_GW, P_OUT, P_DBG, P_WS = [16 + 2 * i for i in range(12)]

def srd(a, d, p, nbytes):
    a(f"s_mov_b32 s{d}, s{p}")
    a(f"s_and_b32 s{d+1}, s{p+1}, 0xffff")
    a(f"s_mov_b32 s{d+2}, {nbytes}")
    a(f"s_mov_b32 s{d+3}, 0x00020000")

def gen_prep():
    a = Asm()
    n = "prep"
    a("s_cmp_ge_u32 s2, 449")
    a(f"s_cbranch_scc1 {n}_end")
    load_ptrs(a)
    a("v_and_b32 v1, 63, v0")
    a("v_lshrrev_b32 v2, 6, v0")
    a("v_readfirstlane_b32 s3, v2")
    a("v_and_b32 v3, 31, v1")
    a("v_lshrrev_b32 v4, 5, v1")
    a("v_lshlrev_b32 v5, 4, v1")
    a("s_waitcnt lgkmcnt(0)")
    srd(a, 48, P_WS, WS_SIZE)
    a("s_cmp_lt_u32 s2, 112")
    a(f"s_cbranch_scc1 {n}_w1")
    a("s_cmp_lt_u32 s2, 256")
    a(f"s_cbranch_scc1 {n}_w2o")
    a("s_cmp_lt_u32 s2, 384")
    a(f"s_cbranch_scc1 {n}_xf")
    a("s_cmp_lt_u32 s2, 448")
    a(f"s_cbranch_scc1 {n}_gate")
    srd(a, 52, P_B1, 1792 * 2)
    srd(a, 56, P_B2, 512 * 2)
    for it in range(7):
        a(f"v_add_u32 v6, {it*256}, v0")
        a("v_and_b32 v7, 0xffffffe0, v6")
        a("v_bfe_u32 v8, v6, 2, 2")
        a("v_lshl_add_u32 v7, v8, 3, v7")
        a("v_bfe_u32 v8, v6, 4, 1")
        a("v_lshl_add_u32 v7, v8, 2, v7")
        a("v_and_b32 v8, 3, v6")
        a("v_add_lshl_u32 v7, v7, v8, 1")
        a("buffer_load_ushort v9, v7, s[52:55], 0 offen")
        a("v_lshlrev_b32 v6, 2, v6")
        a("s_waitcnt vmcnt(0)")
        a("v_lshlrev_b32 v9, 16, v9")
        a(f"s_mov_b32 s4, {B1F}")
        a("buffer_store_dword v9, v6, s[48:51], s4 offen")
    for it in range(2):
        a(f"v_add_u32 v6, {it*256}, v0")
        a("v_lshlrev_b32 v7, 1, v6")
        a("buffer_load_ushort v9, v7, s[56:59], 0 offen")
        a("v_lshlrev_b32 v6, 2, v6")
        a("s_waitcnt vmcnt(0)")
        a("v_lshlrev_b32 v9, 16, v9")
        a(f"s_mov_b32 s4, {B2F}")
        a("buffer_store_dword v9, v6, s[48:51], s4 offen")
    a("s_endpgm")
    a.label(f"{n}_w1")
    srd(a, 52, P_W1, 512 * 1792 * 2)
    a("s_lshl_b32 s4, s2, 2")
    a("s_add_u32 s4, s4, s3")
    a("s_lshl_b32 s4, s4, 2")
    a("v_mul_u32_u24 v6, 28672, v4")
    a("v_lshl_add_u32 v6, v3, 1, v6")
    for q in range(4):
        a(f"s_add_u32 s5, s4, {q}")
        a("s_lshr_b32 s6, s5, 5")
        a("s_and_b32 s7, s5, 31")
        a("s_mul_i32 s7, s7, 57344")
        a("s_lshl_b32 s6, s6, 6")
        a("s_add_u32 s7, s7, s6")
        for j in range(8):
            a(f"buffer_load_ushort v{24+8*q+j}, v6, s[52:55], s7 offen")
            if j < 7: a("s_add_u32 s7, s7, 3584")
    a("s_lshl_b32 s5, s4, 10")
    a(f"s_add_u32 s5, s5, {W1F}")
    a("s_waitcnt vmcnt(0)")
    for i in range(16): a(f"v_lshl_or_b32 v{8+i}, v{25+2*i}, 16, v{24+2*i}")
    for q in range(4):
        a(f"buffer_store_dwordx4 v[{8+4*q}:{11+4*q}], v5, s[48:51], s5 offen offset:{q*1024}")
    a("s_endpgm")
    a.label(f"{n}_w2o")
    a("v_bfe_u32 v6, v3, 2, 1")
    a("v_lshlrev_b32 v6, 4, v6")
    a("v_lshrrev_b32 v7, 3, v3")
    a("v_lshl_add_u32 v6, v7, 2, v6")
    a("v_and_b32 v7, 3, v3")
    a("v_add_lshl_u32 v6, v6, v7, 1")
    a("v_lshl_add_u32 v6, v4, 12, v6")
    a("s_cmp_lt_u32 s2, 224")
    a(f"s_cbranch_scc1 {n}_w2")
    srd(a, 52, P_WO, 512 * 512 * 2)
    a("s_sub_u32 s4, s2, 224")
    a("s_lshl_b32 s4, s4, 2")
    a("s_add_u32 s4, s4, s3")
    a("s_lshl_b32 s4, s4, 2")
    a("s_lshr_b32 s6, s4, 5")
    a("s_and_b32 s7, s4, 31")
    a("s_lshl_b32 s8, s4, 10")
    a(f"s_add_u32 s8, s8, {WOF}")
    a(f"s_branch {n}_w2go")
    a.label(f"{n}_w2")
    srd(a, 52, P_W2, 1792 * 512 * 2)
    a("s_sub_u32 s4, s2, 112")
    a("s_lshl_b32 s4, s4, 2")
    a("s_add_u32 s4, s4, s3")
    a("s_mul_i32 s6, s4, 2341")
    a("s_lshr_b32 s6, s6, 16")
    a("s_mul_i32 s7, s6, 28")
    a("s_sub_u32 s7, s4, s7")
    a("s_lshl_b32 s7, s7, 2")
    a("s_lshl_b32 s8, s4, 12")
    a(f"s_add_u32 s8, s8, {W2F}")
    a.label(f"{n}_w2go")
    a("s_lshl_b32 s7, s7, 14")
    a("s_lshl_b32 s6, s6, 6")
    a("s_add_u32 s7, s7, s6")
    for q in range(4):
        for j in range(8):
            a(f"buffer_load_ushort v{24+8*q+j}, v6, s[52:55], s7 offen offset:{(j%4)*1024}")
            if j % 4 == 3: a("s_add_u32 s7, s7, 8192")
    a("s_waitcnt vmcnt(0)")
    for i in range(16): a(f"v_lshl_or_b32 v{8+i}, v{25+2*i}, 16, v{24+2*i}")
    for q in range(4):
        a(f"buffer_store_dwordx4 v[{8+4*q}:{11+4*q}], v5, s[48:51], s8 offen offset:{q*1024}")
    a("s_endpgm")
    a.label(f"{n}_xf")
    srd(a, 52, P_X, 2048 * 512 * 2)
    a("s_sub_u32 s4, s2, 256")
    a("s_lshl_b32 s4, s4, 2")
    a("s_add_u32 s4, s4, s3")
    a("s_lshl_b32 s4, s4, 2")
    a("s_lshr_b32 s6, s4, 5")
    a("s_and_b32 s7, s4, 31")
    a("s_lshl_b32 s6, s6, 15")
    a("s_lshl_b32 s7, s7, 5")
    a("s_add_u32 s7, s7, s6")
    a("v_lshlrev_b32 v6, 10, v3")
    a("v_lshl_add_u32 v6, v4, 4, v6")
    for q in range(4):
        a(f"buffer_load_dwordx4 v[{8+4*q}:{11+4*q}], v6, s[52:55], s7 offen offset:{q*32}")
    a("s_lshl_b32 s5, s4, 10")
    a(f"s_add_u32 s5, s5, {XF}")
    a("s_waitcnt vmcnt(0)")
    for q in range(4):
        a(f"buffer_store_dwordx4 v[{8+4*q}:{11+4*q}], v5, s[48:51], s5 offen offset:{q*1024}")
    a("s_endpgm")
    a.label(f"{n}_gate")
    srd(a, 52, P_X, 2048 * 512 * 2)
    srd(a, 56, P_GW, 512 * 2)
    a("s_sub_u32 s4, s2, 384")
    a("s_lshl_b32 s4, s4, 2")
    a("s_add_u32 s4, s4, s3")
    a("s_lshl_b32 s5, s4, 13")
    a("v_lshlrev_b32 v6, 7, v1")
    a("v_and_b32 v7, 7, v1")
    a("v_lshlrev_b32 v7, 7, v7")
    for q in range(8):
        a(f"buffer_load_dwordx4 v[{8+4*q}:{11+4*q}], v6, s[52:55], s5 offen offset:{q*16}")
        a(f"buffer_load_dwordx4 v[{40+4*q}:{43+4*q}], v7, s[56:59], 0 offen offset:{q*16}")
    a("v_mov_b32 v72, 0")
    a("s_waitcnt vmcnt(0)")
    for q in range(32):
        a(f"v_dot2_f32_bf16 v72, v{8+q}, v{40+q}, v72")
    a("s_nop 3")
    a("v_add_f32 v72, v72, v72 quad_perm:[1,0,3,2]")
    a("v_add_f32 v72, v72, v72 quad_perm:[2,3,0,1]")
    a("v_add_f32 v72, v72, v72 row_half_mirror")
    a(f"v_mul_f32 v72, {f32hex(-LOG2E)}, v72")
    a("v_exp_f32 v72, v72")
    a("v_add_f32 v72, 1.0, v72")
    a("v_rcp_f32 v72, v72")
    a("v_lshrrev_b32 v6, 3, v1")
    a("v_lshlrev_b32 v6, 2, v6")
    a("s_lshl_b32 s5, s4, 5")
    a(f"s_add_u32 s5, s5, {GT}")
    a("buffer_store_dword v72, v6, s[48:51], s5 offen")
    a.label(f"{n}_end")
    a("s_endpgm")
    return a, 80

NB = 5; STG = 28672
def gen_qkv():
    a = Asm()
    n = "qkv"
    a("s_cmp_ge_u32 s2, 256")
    a(f"s_cbranch_scc1 {n}_end")
    load_ptrs(a)
    a("v_and_b32 v1, 63, v0")
    a("v_lshrrev_b32 v2, 6, v0")
    a("v_readfirstlane_b32 s3, v2")
    a("s_and_b32 s6, s2, 7")
    a("s_lshr_b32 s7, s2, 3")
    a("s_and_b32 s4, s6, 1")
    a("s_lshl_b32 s4, s4, 3")
    a("s_and_b32 s8, s7, 7")
    a("s_add_u32 s4, s4, s8")
    a("s_lshr_b32 s5, s6, 1")
    a("s_lshl_b32 s5, s5, 2")
    a("s_lshr_b32 s8, s7, 3")
    a("s_add_u32 s5, s5, s8")
    a("s_waitcnt lgkmcnt(0)")
    srd(a, 48, P_WS, WS_SIZE)
    a("s_cmp_lt_u32 s3, 4")
    a(f"s_cbranch_scc1 {n}_cons")
    srd(a, 40, P_X, 2048 * 512 * 2)
    srd(a, 44, P_WQKV, 512 * 1536 * 2)
    a("s_sub_u32 s3, s3, 4")
    a("v_lshrrev_b32 v3, 3, v1")
    a("v_lshlrev_b32 v3, 10, v3")
    a("v_and_b32 v4, 7, v1")
    a("v_lshrrev_b32 v5, 4, v1")
    a("v_xor_b32 v4, v4, v5")
    for jj in range(4):
        if jj & 1: a("v_xor_b32 v5, 4, v4")
        else: a("v_mov_b32 v5, v4")
        a(f"v_lshl_add_u32 v{8+jj}, v5, 4, v3")
        if jj: a(f"v_add_u32 v{8+jj}, {jj*7168}, v{8+jj}")
    a("v_lshrrev_b32 v5, 2, v1")
    a("v_mul_u32_u24 v12, 3072, v5")
    a("v_and_b32 v5, 3, v1")
    a("v_lshl_add_u32 v12, v5, 4, v12")
    a("s_lshl_b32 s10, s4, 17")
    a("s_lshl_b32 s8, s3, 15")
    a("s_add_u32 s10, s10, s8")
    a("s_mul_i32 s11, s3, 49152")
    a("s_lshl_b32 s8, s5, 6")
    a("s_add_u32 s11, s11, s8")
    a("s_lshl_b32 s12, s3, 12")
    a("s_mul_i32 s13, s3, 3072")
    a("s_add_u32 s13, s13, 16384")
    vm = VmTracker()
    def issue(st):
        b = (st % NB) * STG
        a(f"s_add_u32 m0, s12, {b}")
        a(f"s_add_u32 s14, s10, {st*128}")
        for jj in range(4):
            a(f"buffer_load_dwordx4 v{8+jj}, s[40:43], s14 offen offset:{jj*1024} lds"); vm.issue(st)
        a(f"s_add_u32 m0, s13, {b}")
        a(f"s_add_u32 s15, s11, {st*64*3072}")
        for sg in range(3):
            a(f"buffer_load_dwordx4 v12, s[44:47], s15 offen offset:{sg*1024} lds"); vm.issue(st)
    for st in range(NB): issue(st)
    for st in range(8):
        a(f"s_waitcnt vmcnt({vm.wait_for(st)})")
        a("s_barrier")
        if st >= 1 and st + NB - 1 < 8: issue(st + NB - 1)
    a("s_endpgm")
    a.label(f"{n}_cons")
    a("v_and_b32 v3, 31, v1")
    a("v_lshrrev_b32 v4, 5, v1")
    a("s_lshl_b32 s8, s3, 12")
    a("v_bfe_u32 v5, v3, 1, 3")
    a("v_lshlrev_b32 v6, 7, v3")
    a("v_add_u32 v6, s8, v6")
    XA = 8
    for s in range(4):
        a(f"v_add_u32 v7, {2*s}, v4")
        a("v_xor_b32 v7, v7, v5")
        a(f"v_lshl_add_u32 v{XA+s}, v7, 4, v6")
    a("v_bfe_u32 v7, v1, 2, 2")
    a("v_lshl_add_u32 v7, v4, 3, v7")
    a("v_lshlrev_b32 v7, 6, v7")
    a("v_bfe_u32 v5, v1, 4, 1")
    a("v_lshl_add_u32 v7, v5, 5, v7")
    a("v_and_b32 v5, 3, v1")
    a("v_lshl_add_u32 v7, v5, 3, v7")
    a(f"v_add_u32 v{XA+4}, 16384, v7")
    for sset in (1, 2):
        for k in range(5):
            a(f"v_add_u32 v{XA+5*sset+k}, {sset*2*STG}, v{XA+k}")
    FR = [24, 40]
    ACC = [56, 72, 88]
    def reads(st, s, fb):
        b = st % NB; sset = b // 2; off = (b % 2) * STG
        f = FR[fb]
        a(f"ds_read_b128 {vr(f,4)}, v{XA+5*sset+s} offset:{off}")
        for g in range(3):
            for t in range(2):
                a(f"ds_read_b64_tr_b16 {vr(f+4+4*g+2*t,2)}, v{XA+5*sset+4} offset:{off + s*3072 + g*1024 + t*256}")
    first = True
    for st in range(8):
        a("s_barrier")
        reads(st, 0, 0)
        for s in range(4):
            fb = s & 1
            if s < 3:
                reads(st, s + 1, fb ^ 1)
                a("s_waitcnt lgkmcnt(7)")
            else:
                a("s_waitcnt lgkmcnt(0)")
            f = FR[fb]
            c = lambda x: "0" if first else vr(x, 16)
            a(f"{MF} {vr(ACC[0],16)}, {vr(f+4,4)}, {vr(f,4)}, {c(ACC[0])}")
            a(f"{MF} {vr(ACC[1],16)}, {vr(f+8,4)}, {vr(f,4)}, {c(ACC[1])}")
            a(f"{MF} {vr(ACC[2],16)}, {vr(f,4)}, {vr(f+12,4)}, {c(ACC[2])}")
            first = False
    a("s_lshl_b32 s8, s4, 2")
    a("s_add_u32 s8, s8, s3")
    a("s_lshl_b32 s9, s5, 17")
    a("s_lshl_b32 s10, s8, 10")
    a("s_add_u32 s10, s10, s9")
    a("v_lshlrev_b32 v5, 4, v1")
    sc = f32hex(0.25 * LOG2E)
    for i in range(16): a(f"v_mul_f32 v{ACC[0]+i}, {sc}, v{ACC[0]+i}")
    for i in range(8): a(f"v_cvt_pk_bf16_f32 v{24+i}, v{ACC[0]+2*i}, v{ACC[0]+2*i+1}")
    for i in range(8): a(f"v_cvt_pk_bf16_f32 v{32+i}, v{ACC[1]+2*i}, v{ACC[1]+2*i+1}")
    for i in range(8): a(f"v_cvt_pk_bf16_f32 v{40+i}, v{ACC[2]+2*i}, v{ACC[2]+2*i+1}")
    a(f"s_add_u32 s11, s10, {QF}")
    a("buffer_store_dwordx4 v[24:27], v5, s[48:51], s11 offen")
    a(f"s_add_u32 s11, s10, {QF+65536}")
    a("buffer_store_dwordx4 v[28:31], v5, s[48:51], s11 offen")
    a(f"s_add_u32 s11, s10, {KF}")
    a("buffer_store_dwordx4 v[32:35], v5, s[48:51], s11 offen")
    a(f"s_add_u32 s11, s10, {KF+65536}")
    a("buffer_store_dwordx4 v[36:39], v5, s[48:51], s11 offen")
    a("v_bfe_u32 v6, v1, 4, 1")
    a("v_lshlrev_b32 v6, 16, v6")
    a("v_lshl_add_u32 v6, v4, 8, v6")
    a("v_and_b32 v7, 15, v1")
    a("v_lshl_add_u32 v6, v7, 4, v6")
    a(f"s_add_u32 s11, s10, {VF}")
    a("buffer_store_dwordx4 v[40:43], v6, s[48:51], s11 offen")
    a("buffer_store_dwordx4 v[44:47], v6, s[48:51], s11 offen offset:512")
    a.label(f"{n}_end")
    a("s_endpgm")
    return a, 104

def gelu_pack(a, acc, tmp, dst):
    c0 = -2.0 * math.sqrt(2.0 / math.pi) * LOG2E
    c1 = c0 * 0.044715
    for i in range(16): a(f"v_mul_f32 v{tmp+i}, v{acc+i}, v{acc+i}")
    for i in range(16): a(f"v_fma_f32 v{tmp+i}, v{tmp+i}, s60, v{tmp+16}")
    for i in range(16): a(f"v_mul_f32 v{tmp+i}, v{tmp+i}, v{acc+i}")
    for i in range(16): a(f"v_exp_f32 v{tmp+i}, v{tmp+i}")
    for i in range(16): a(f"v_add_f32 v{tmp+i}, 1.0, v{tmp+i}")
    for i in range(16): a(f"v_rcp_f32 v{tmp+i}, v{tmp+i}")
    for i in range(16): a(f"v_mul_f32 v{tmp+i}, v{tmp+i}, v{acc+i}")
    for i in range(8): a(f"v_cvt_pk_bf16_f32 v{dst+i}, v{tmp+2*i}, v{tmp+2*i+1}")
GELU_C0 = -2.0 * math.sqrt(2.0 / math.pi) * LOG2E
GELU_C1 = GELU_C0 * 0.044715

def gen_ffn1():
    a = Asm()
    n = "ffn1"
    a("s_cmp_ge_u32 s2, 256")
    a(f"s_cbranch_scc1 {n}_end")
    load_ptrs(a)
    a("v_and_b32 v1, 63, v0")
    a("v_lshrrev_b32 v2, 6, v0")
    a("v_readfirstlane_b32 s3, v2")
    a("s_and_b32 s4, s2, 7")
    a("s_lshl_b32 s4, s4, 2")
    a("s_bfe_u32 s5, s2, 0x20003")
    a("s_add_u32 s4, s4, s5")
    a("s_lshr_b32 s5, s2, 5")
    a("s_lshl_b32 s6, s3, 3")
    a("s_add_u32 s5, s5, s6")
    a("s_cmp_ge_u32 s5, 28")
    a(f"s_cbranch_scc1 {n}_end")
    a("v_lshlrev_b32 v5, 4, v1")
    a("v_lshrrev_b32 v4, 5, v1")
    a("v_lshlrev_b32 v4, 6, v4")
    a("s_waitcnt lgkmcnt(0)")
    srd(a, 48, P_WS, WS_SIZE)
    a("s_lshl_b32 s6, s5, 8")
    a(f"s_add_u32 s6, s6, {B1F}")
    BI = 8
    for t in range(2):
        for q in range(4):
            a(f"buffer_load_dwordx4 {vr(BI+16*t+4*q,4)}, v4, s[48:51], s6 offen offset:{t*128+q*16}")
    a("s_lshl_b32 s8, s5, 16")
    a(f"s_add_u32 s8, s8, {W1F}")
    a("s_add_u32 s9, s8, 32768")
    a("s_lshl_b32 s10, s4, 16")
    a(f"s_add_u32 s10, s10, {XF}")
    a("s_add_u32 s11, s10, 32768")
    ACC = [40, 56, 72, 88]
    D = 4
    FR = 104
    vm = VmTracker()
    vm.issue('b')
    def ld(ks):
        f = FR + 16 * (ks % D)
        for k in range(4):
            a(f"buffer_load_dwordx4 {vr(f+4*k,4)}, v5, s[48:51], s{8+k} offen offset:{(ks%4)*1024}"); vm.issue(ks)
        if ks % 4 == 3:
            for k in range(4): a(f"s_add_u32 s{8+k}, s{8+k}, 4096")
    for ks in range(D): ld(ks)
    for ks in range(32):
        a(f"s_waitcnt vmcnt({vm.wait_for(ks)})")
        f = FR + 16 * (ks % D)
        for ft in range(2):
            for rt in range(2):
                c = vr(BI + 16 * ft, 16) if ks == 0 else vr(ACC[2*ft+rt], 16)
                a(f"{MF} {vr(ACC[2*ft+rt],16)}, {vr(f+4*ft,4)}, {vr(f+8+4*rt,4)}, {c}")
        if ks + D < 32: ld(ks + D)
    a(f"s_mov_b32 s60, {f32hex(GELU_C1)}")
    TMP = 104
    a(f"v_mov_b32 v{TMP+16}, {f32hex(GELU_C0)}")
    a("s_mul_i32 s6, s4, 229376")
    a("s_lshl_b32 s7, s5, 12")
    a("s_add_u32 s6, s6, s7")
    a(f"s_add_u32 s6, s6, {HF}")
    a("s_add_u32 s7, s6, 114688")
    for ft in range(2):
        for rt in range(2):
            dst = 8 + 8 * (2 * ft + rt)
            gelu_pack(a, ACC[2*ft+rt], TMP, dst)
            a(f"buffer_store_dwordx4 {vr(dst,4)}, v5, s[48:51], s{6+rt} offen offset:{ft*2048}")
            a(f"buffer_store_dwordx4 {vr(dst+4,4)}, v5, s[48:51], s{6+rt} offen offset:{ft*2048+1024}")
    a.label(f"{n}_end")
    a("s_endpgm")
    return a, 168

def gen_attn():
    a = Asm()
    n = "attn"
    a("s_cmp_ge_u32 s2, 256")
    a(f"s_cbranch_scc1 {n}_end")
    load_ptrs(a)
    a("v_and_b32 v1, 63, v0")
    a("v_lshrrev_b32 v2, 6, v0")
    a("v_readfirstlane_b32 s3, v2")
    a("s_and_b32 s4, s2, 7")
    a("s_lshl_b32 s4, s4, 2")
    a("s_bfe_u32 s5, s2, 0x20003")
    a("s_add_u32 s4, s4, s5")
    a("s_lshr_b32 s5, s2, 5")
    a("v_lshlrev_b32 v2, 4, v1")
    a("s_lshl_b32 s6, s4, 16")
    a("s_and_b32 s7, s3, 3")
    a("s_lshr_b32 s8, s3, 2")
    a("s_waitcnt lgkmcnt(0)")
    srd(a, 48, P_WS, WS_SIZE)
    Q = [4, 8]; Kf = [12, 16]; Vf = [20, 28]; Cn = [36, 52]; S = [68, 84]; P = [100, 108]; O = [116, 132]
    VKA = 148; VVA = 149; VG = 150; VM = [152, 153]; VT = 154
    vm = VmTracker()
    a("s_and_b32 s9, s3, 1")
    a("s_bfe_u32 s10, s3, 0x10001")
    a("s_lshr_b32 s11, s3, 2")
    a("s_lshl_b32 s10, s10, 15")
    a("s_lshl_b32 s11, s11, 10")
    a("s_add_u32 s10, s10, s11")
    a("s_lshl_b32 s11, s9, 16")
    a("s_add_u32 s11, s11, s10")
    a("s_lshl_b32 s12, s9, 21")
    a("s_add_u32 s12, s12, s10")
    a("s_add_u32 s12, s12, s6")
    a(f"s_add_u32 s12, s12, {KF}")
    def dma(i, tag):
        if i % 2 == 0:
            a(f"s_add_u32 m0, s11, {i*2048}")
            a(f"s_add_u32 s13, s12, {i*2048}")
        a(f"buffer_load_dwordx4 v2, s[48:51], s13 offen offset:{(i%2)*2048} lds"); vm.issue(tag)
    dma(0, 'c0'); dma(1, 'c0')
    a("s_lshl_b32 s14, s5, 3")
    a("s_lshl_b32 s15, s7, 1")
    a("s_add_u32 s14, s14, s15")
    a("s_lshl_b32 s15, s14, 10")
    a("s_add_u32 s15, s15, s6")
    for t in range(2):
        a(f"buffer_load_dwordx4 {vr(Q[t],4)}, v2, s[48:51], s15 offen offset:{t*1024}"); vm.issue('c0')
    for i in range(2, 6): dma(i, 'c1')
    for i in range(6, 16): dma(i, 'c2')
    a("v_and_b32 v3, 31, v1")
    a("v_lshlrev_b32 v3, 2, v3")
    a("s_add_u32 s15, s14, s8")
    a("s_lshl_b32 s15, s15, 7")
    a(f"s_add_u32 s15, s15, {GT}")
    a(f"buffer_load_dword v{VG}, v3, s[48:51], s15 offen"); vm.issue('g')
    a("s_lshl_b32 s15, s8, 15")
    a(f"v_add_u32 v{VKA}, s15, v2")
    a("v_and_b32 v3, 15, v1")
    a("v_lshlrev_b32 v3, 4, v3")
    a("v_lshrrev_b32 v155, 5, v1")
    a("v_lshl_add_u32 v3, v155, 8, v3")
    a("s_add_u32 s15, s15, 65536")
    a(f"v_add_u32 v{VVA}, s15, v3")
    a("v_and_b32 v3, 27, v1")
    a("v_cmp_eq_u32 vcc, 16, v3")
    a("v_mov_b32 v3, 0x3f803f80")
    a("v_cndmask_b32 v3, 0, v3, vcc")
    for b in range(2):
        for i in range(8): a(f"v_mov_b32 v{Vf[b]+i}, v3")
    a("s_mov_b32 s20, 0x0000ffff")
    a("s_mov_b32 s21, 0x0000ffff")
    a("s_mov_b32 s22, 0")
    a(f"s_waitcnt vmcnt({vm.wait_for('c0')})")
    a("s_barrier")
    a(f"ds_read_b128 {vr(Kf[0],4)}, v{VKA}")
    a("s_waitcnt lgkmcnt(0)")
    for t in range(2):
        a(f"{MF} {vr(S[t],16)}, {vr(Kf[0],4)}, {vr(Q[t],4)}, 0")
    for t in range(2):
        s = S[t]
        a(f"v_max3_f32 v{VM[t]}, v{s}, v{s+1}, v{s+2}")
        for i in range(3, 15, 2):
            a(f"v_max3_f32 v{VM[t]}, v{VM[t]}, v{s+i}, v{s+i+1}")
        a(f"v_max_f32 v{VM[t]}, v{VM[t]}, v{s+15}")
    a.label(f"{n}_setup")
    for t in range(2):
        a(f"v_mov_b32 v{VT}, v{VM[t]}")
        a(f"v_permlane32_swap_b32 v{VT}, v{VM[t]}")
        a(f"v_max_f32 v{VM[t]}, v{VM[t]}, v{VT}")
    for t in range(2):
        for i in range(16): a(f"v_sub_f32 v{Cn[t]+i}, 0, v{VM[t]}")
        for i in range(16): a(f"v_mov_b32 v{O[t]+i}, 0")
    a(f"v_mov_b32 v156, v{VKA}")
    a(f"v_mov_b32 v157, v{VVA}")
    a(f"ds_read_b128 {vr(Kf[0],4)}, v156")
    a("s_waitcnt lgkmcnt(0)")
    a(f"{MF} {vr(S[0],16)}, {vr(Kf[0],4)}, {vr(Q[0],4)}, {vr(Cn[0],16)}")
    a("s_mov_b32 s23, 0")
    a("s_nop 7")
    a.label(f"{n}_loop")
    U = 2
    a("s_cmp_eq_u32 s23, 1")
    a(f"s_cbranch_scc1 {n}_bar1")
    a("s_cmp_eq_u32 s23, 5")
    a(f"s_cbranch_scc1 {n}_bar2")
    a.label(f"{n}_body")
    step = 0
    for u in range(U):
        kb = u & 1
        for qt in range(2):
            s = S[step & 1]; sn = S[(step + 1) & 1]; p = P[step & 1]
            if qt == 0:
                a(f"ds_read_b128 {vr(Kf[kb^1],4)}, v156 offset:{(u+1)*1024}")
                a("s_mov_b64 exec, s[20:21]")
                a(f"ds_read_b128 {vr(Vf[kb],4)}, v157 offset:{u*1024}")
                a(f"ds_read_b128 {vr(Vf[kb]+4,4)}, v157 offset:{u*1024+512}")
                a("s_mov_b64 exec, -1")
            nq = (qt + 1) % 2
            nk = kb if qt == 0 else kb ^ 1
            smf = f"{MF} {vr(sn,16)}, {vr(Kf[nk],4)}, {vr(Q[nq],4)}, {vr(Cn[nq],16)}"
            pv1 = f"{MF} {vr(O[qt],16)}, {vr(Vf[kb],4)}, {vr(p,4)}, {vr(O[qt],16)}"
            pv2 = f"{MF} {vr(O[qt],16)}, {vr(Vf[kb]+4,4)}, {vr(p+4,4)}, {vr(O[qt],16)}"
            ex = [f"v_exp_f32 v{s+i}, v{s+i}" for i in range(16)]
            cv = [f"v_cvt_pk_bf16_f32 v{p+i}, v{s+2*i}, v{s+2*i+1}" for i in range(8)]
            seq = [smf] + ex[0:4] + [cv[0]] + ex[4:6] + [cv[1]] + ex[6:8] + [cv[2]] + ex[8:10] + [cv[3]] + ex[10:12] + [cv[4]]
            if qt == 0: seq += ["s_waitcnt lgkmcnt(0)"]
            seq += [pv1] + ex[12:14] + [cv[5]] + ex[14:16] + [cv[6], cv[7], pv2]
            for x in seq: a(x)
            step += 1
    a(f"v_add_u32 v156, {U*1024}, v156")
    a(f"v_add_u32 v157, {U*1024}, v157")
    a("s_add_u32 s23, s23, 1")
    a(f"s_cmp_lt_u32 s23, {32//U}")
    a(f"s_cbranch_scc1 {n}_loop")
    a("s_nop 7")
    a("s_nop 7")
    a("s_cmp_eq_u32 s22, 1")
    a(f"s_cbranch_scc1 {n}_fin")
    lst = [O[0] + i for i in range(3, 8)] + [O[1] + i for i in range(8)]
    a(f"v_add_f32 v{VT}, |v{O[0]}|, |v{O[0]+1}|")
    for r in [O[0] + i for i in range(2, 8)] + [O[1] + i for i in range(8)]:
        a(f"v_add_f32 v{VT}, v{VT}, |v{r}|")
    a(f"v_mul_f32 v{VT}, 0, v{VT}")
    a(f"v_add_f32 v{VT}, v{VT}, v{O[0]+8}")
    a(f"v_add_f32 v{VT}, v{VT}, v{O[1]+8}")
    a(f"v_mov_b32 v155, 0x5d800000")
    a(f"v_cmp_nle_f32 vcc, v{VT}, v155")
    a("s_cmp_eq_u64 vcc, 0")
    a(f"s_cbranch_scc1 {n}_fin")
    a("s_mov_b32 s22, 1")
    a(f"v_mov_b32 v156, v{VKA}")
    for t in range(2): a(f"v_mov_b32 v{VM[t]}, 0xff800000")
    a("s_mov_b32 s23, 0")
    a.label(f"{n}_mx")
    a(f"ds_read_b128 {vr(Kf[0],4)}, v156")
    a("s_waitcnt lgkmcnt(0)")
    for t in range(2):
        a(f"{MF} {vr(S[t],16)}, {vr(Kf[0],4)}, {vr(Q[t],4)}, 0")
    for t in range(2):
        s = S[t]
        for i in range(0, 16, 2):
            a(f"v_max3_f32 v{VM[t]}, v{VM[t]}, v{s+i}, v{s+i+1}")
    a("v_add_u32 v156, 1024, v156")
    a("s_add_u32 s23, s23, 1")
    a("s_cmp_lt_u32 s23, 32")
    a(f"s_cbranch_scc1 {n}_mx")
    a(f"s_branch {n}_setup")
    a.label(f"{n}_bar1")
    a("s_cmp_eq_u32 s22, 1")
    a(f"s_cbranch_scc1 {n}_body")
    a(f"s_waitcnt vmcnt({vm.wait_for('c1')})")
    a("s_barrier")
    a(f"s_branch {n}_body")
    a.label(f"{n}_bar2")
    a("s_cmp_eq_u32 s22, 1")
    a(f"s_cbranch_scc1 {n}_body")
    a(f"s_waitcnt vmcnt(0)")
    a("s_barrier")
    a(f"s_branch {n}_body")
    a.label(f"{n}_fin")
    a("s_mul_i32 s9, s3, 3072")
    a("s_add_u32 s9, s9, 131072")
    a("v_add_u32 v3, s9, v2")
    a("s_xor_b32 s10, s3, 4")
    a("s_mul_i32 s10, s10, 3072")
    a("s_add_u32 s10, s10, 131072")
    a("v_add_u32 v155, s10, v2")
    a("s_cmp_eq_u32 s8, 0")
    a(f"s_cbranch_scc1 {n}_h0")
    for i in range(9):
        a(f"v_swap_b32 v{O[0]+i}, v{O[1]+i}")
    a(f"v_swap_b32 v{VM[0]}, v{VM[1]}")
    a.label(f"{n}_h0")
    a(f"v_mov_b32 v{O[1]+9}, v{VM[1]}")
    a(f"ds_write_b128 v3, {vr(O[1],4)}")
    a(f"ds_write_b128 v3, {vr(O[1]+4,4)} offset:1024")
    a(f"ds_write_b128 v3, {vr(O[1]+8,4)} offset:2048")
    a("s_waitcnt lgkmcnt(0)")
    a("s_barrier")
    R = S[0]
    a(f"ds_read_b128 {vr(R,4)}, v155")
    a(f"ds_read_b128 {vr(R+4,4)}, v155 offset:1024")
    a(f"ds_read_b128 {vr(R+8,4)}, v155 offset:2048")
    a("s_waitcnt lgkmcnt(0)")
    a(f"v_max_f32 v{VT}, v{VM[0]}, v{R+9}")
    a(f"v_sub_f32 v{R+12}, v{VM[0]}, v{VT}")
    a(f"v_sub_f32 v{R+13}, v{R+9}, v{VT}")
    a(f"v_exp_f32 v{R+12}, v{R+12}")
    a(f"v_exp_f32 v{R+13}, v{R+13}")
    a(f"v_mul_f32 v{R+14}, v{O[0]+8}, v{R+12}")
    a(f"v_fma_f32 v{R+14}, v{R+8}, v{R+13}, v{R+14}")
    a(f"v_rcp_f32 v{R+14}, v{R+14}")
    a("s_waitcnt vmcnt(0)")
    a(f"v_mul_f32 v{R+14}, v{R+14}, v{VG}")
    a(f"v_mul_f32 v{R+12}, v{R+12}, v{R+14}")
    a(f"v_mul_f32 v{R+13}, v{R+13}, v{R+14}")
    for i in range(8):
        a(f"v_mul_f32 v{O[0]+i}, v{O[0]+i}, v{R+12}")
        a(f"v_fma_f32 v{O[0]+i}, v{R+i}, v{R+13}, v{O[0]+i}")
    for i in range(4):
        a(f"v_cvt_pk_bf16_f32 v{P[0]+i}, v{O[0]+2*i}, v{O[0]+2*i+1}")
    a("s_add_u32 s15, s14, s8")
    a("s_lshl_b32 s15, s15, 15")
    a("s_lshl_b32 s9, s4, 10")
    a("s_add_u32 s15, s15, s9")
    a(f"s_add_u32 s15, s15, {OF}")
    a(f"buffer_store_dwordx4 {vr(P[0],4)}, v2, s[48:51], s15 offen")
    a.label(f"{n}_end")
    a("s_endpgm")
    return a, 160

def gen_fin():
    a = Asm()
    n = "fin"
    a("s_cmp_ge_u32 s2, 256")
    a(f"s_cbranch_scc1 {n}_end")
    load_ptrs(a)
    a("v_and_b32 v1, 63, v0")
    a("v_lshrrev_b32 v2, 6, v0")
    a("v_readfirstlane_b32 s3, v2")
    a("s_and_b32 s4, s2, 7")
    a("s_lshl_b32 s4, s4, 2")
    a("s_bfe_u32 s5, s2, 0x20003")
    a("s_add_u32 s4, s4, s5")
    a("s_lshr_b32 s5, s2, 5")
    a("v_lshlrev_b32 v5, 4, v1")
    a("s_waitcnt lgkmcnt(0)")
    srd(a, 48, P_WS, WS_SIZE)
    srd(a, 52, P_OUT, 2048 * 512 * 2)
    vm = VmTracker()
    a("v_and_b32 v3, 31, v1")
    a("v_lshlrev_b32 v6, 2, v3")
    a("s_lshl_b32 s6, s4, 8")
    a(f"s_add_u32 s6, s6, {GT}")
    a("buffer_load_dword v8, v6, s[48:51], s6 offen"); vm.issue('g')
    a("buffer_load_dword v9, v6, s[48:51], s6 offen offset:128"); vm.issue('g')
    a("s_mul_i32 s7, s3, 28672")
    a("s_mul_i32 s8, s5, 229376")
    a("s_add_u32 s8, s8, s7")
    a(f"s_add_u32 s8, s8, {W2F}")
    a("s_add_u32 s9, s8, 114688")
    a("s_mul_i32 s10, s4, 229376")
    a("s_add_u32 s10, s10, s7")
    a(f"s_add_u32 s10, s10, {HF}")
    a("s_add_u32 s11, s10, 114688")
    a("s_lshl_b32 s7, s3, 13")
    a("s_lshl_b32 s12, s5, 16")
    a("s_add_u32 s12, s12, s7")
    a(f"s_add_u32 s12, s12, {WOF}")
    a("s_add_u32 s13, s12, 32768")
    a("s_lshl_b32 s14, s4, 16")
    a("s_add_u32 s14, s14, s7")
    a(f"s_add_u32 s14, s14, {OF}")
    a("s_add_u32 s15, s14, 32768")
    ACC = [16, 32, 48, 64]
    D = 5
    FR = 80
    NK = 36
    def ld(ks):
        f = FR + 16 * (ks % D)
        base = 8 if ks < 28 else 12
        kk = ks if ks < 28 else ks - 28
        for k in range(4):
            a(f"buffer_load_dwordx4 {vr(f+4*k,4)}, v5, s[48:51], s{base+k} offen offset:{(kk%4)*1024}"); vm.issue(ks)
        if kk % 4 == 3:
            for k in range(4): a(f"s_add_u32 s{base+k}, s{base+k}, 4096")
    for ks in range(D): ld(ks)
    for ks in range(NK):
        a(f"s_waitcnt vmcnt({vm.wait_for(ks)})")
        if ks == 28:
            a("v_sub_f32 v8, 1.0, v8")
            a("v_sub_f32 v9, 1.0, v9")
            for nt in range(2):
                for rt in range(2):
                    for i in range(16): a(f"v_mul_f32 v{ACC[2*nt+rt]+i}, v{ACC[2*nt+rt]+i}, v{8+rt}")
        f = FR + 16 * (ks % D)
        for nt in range(2):
            for rt in range(2):
                c = "0" if ks == 0 else vr(ACC[2*nt+rt], 16)
                a(f"{MF} {vr(ACC[2*nt+rt],16)}, {vr(f+4*nt,4)}, {vr(f+8+4*rt,4)}, {c}")
        if ks + D < NK: ld(ks + D)
    a("v_lshrrev_b32 v4, 5, v1")
    a("v_lshlrev_b32 v6, 6, v4")
    a("s_lshr_b32 s6, s3, 1")
    a("s_lshl_b32 s7, s5, 1")
    a("s_add_u32 s6, s6, s7")
    a("s_lshl_b32 s7, s6, 7")
    a(f"s_add_u32 s7, s7, {B2F}")
    BI = 80
    for q in range(4):
        a(f"buffer_load_dwordx4 {vr(BI+4*q,4)}, v6, s[48:51], s7 offen offset:{q*16}")
    a("s_lshl_b32 s8, s3, 12")
    a("v_add_u32 v7, s8, v5")
    for q in range(4):
        for k in range(4):
            a(f"ds_write_b128 v7, {vr(ACC[q]+4*k,4)} offset:{q*16384 + k*1024}")
    a("s_waitcnt lgkmcnt(0)")
    a("s_barrier")
    a("s_lshl_b32 s8, s3, 14")
    a("v_add_u32 v7, s8, v5")
    for w in range(4):
        for k in range(4):
            a(f"ds_read_b128 {vr(ACC[w]+4*k,4)}, v7 offset:{w*4096 + k*1024}")
    a("s_and_b32 s9, s3, 1")
    a("s_cmp_eq_u32 s9, 1")
    a("s_cselect_b64 vcc, -1, 0")
    a("v_cndmask_b32 v8, v8, v9, vcc")
    a("s_waitcnt vmcnt(0) lgkmcnt(0)")
    for i in range(16):
        a(f"v_add_f32 v{ACC[0]+i}, v{ACC[0]+i}, v{ACC[1]+i}")
        a(f"v_add_f32 v{ACC[2]+i}, v{ACC[2]+i}, v{ACC[3]+i}")
        a(f"v_fma_f32 v{ACC[0]+i}, v{BI+i}, v8, v{ACC[0]+i}")
        a(f"v_add_f32 v{ACC[0]+i}, v{ACC[0]+i}, v{ACC[2]+i}")
    for i in range(8):
        a(f"v_cvt_pk_bf16_f32 v{ACC[1]+i}, v{ACC[0]+2*i}, v{ACC[0]+2*i+1}")
    a("s_lshl_b32 s10, s4, 1")
    a("s_add_u32 s10, s10, s9")
    a("s_lshl_b32 s10, s10, 15")
    a("s_lshl_b32 s11, s6, 6")
    a("s_add_u32 s10, s10, s11")
    a("v_lshlrev_b32 v6, 10, v3")
    a("v_lshl_add_u32 v6, v4, 5, v6")
    a(f"buffer_store_dwordx4 {vr(ACC[1],4)}, v6, s[52:55], s10 offen")
    a(f"buffer_store_dwordx4 {vr(ACC[1]+4,4)}, v6, s[52:55], s10 offen offset:16")
    a.label(f"{n}_end")
    a("s_endpgm")
    return a, 160

def main(out):
    ks = [("prep_kernel", gen_prep, 449, 256, 0),
          ("qkv_kernel", gen_qkv, 256, 512, NB * STG),
          ("ffn1_kernel", gen_ffn1, 256, 256, 0),
          ("attn_kernel", gen_attn, 256, 512, 131072 + 8 * 3072),
          ("fin_kernel", gen_fin, 256, 256, 65536)]
    txt = ""
    for name, g, grid, blk, lds in ks:
        txt += f"; @launch kernel={name} grid=({grid},1,1) block=({blk},1,1) lds={lds}\n"
    txt += '.amdgcn_target "amdgcn-amd-amdhsa--gfx950"\n.text\n'
    desc = '.section .rodata,"a"\n'
    for name, g, grid, blk, lds in ks:
        a, nv = g()
        pr = a.check_all_edges()
        for p in pr: print("HAZARD on edge in", name, p, file=sys.stderr)
        print(name, "instrs", len(a.ins), "auto nops", a.nops_added, file=sys.stderr)
        txt += kernel_header(name) + a.text()
        desc += ".p2align 6\n" + kernel_desc(name, nv)
    open(out, "w").write(txt + desc)

if __name__ == "__main__":
    main(sys.argv[1] if len(sys.argv) > 1 else "k1.s")
```

```python
import sys, math, struct
from asmlib import *

NAME = "gated_mix__softmax_full_mha__dense_activation_gelu__prompt"
def f32hex(x): return "0x%08x" % struct.unpack('<I', struct.pack('<f', x))[0]
def vr(a, n=1): return f"v{a}" if n == 1 else f"v[{a}:{a+n-1}]"
MF = "v_mfma_f32_32x32x16_bf16"
LOG2E = 1.4426950408889634
GELU_C0 = -2.0 * math.sqrt(2.0 / math.pi) * LOG2E
GELU_C1 = GELU_C0 * 0.044715

QF = 0x000000; KF = 0x200000; VF = 0x400000; OF = 0x800000
F2 = 0xEA0000; F3 = 0xEA2000; GO = 0xEA8000; G8 = 0xEB0000; HF = 0x1000000
STAMP = 0x1800000
WS_SIZE = 0x2000000
NS = 6; SLOT = 14336; WBASE = 65536; GWB = WBASE + NS * SLOT; GRED = GWB + 1024
RING = 131072; RSL = 3; CNT = 163840 - 64
LDS_TOTAL = 163840
P_X, P_WQKV, P_WO, P_BX, P_W1, P_B1, P_W2, P_B2, P_GW, P_OUT, P_DBG, P_WS = [16 + 2 * i for i in range(12)]

OPT = set(x for x in sys.argv[1:] if x.startswith('--'))
DO_STAMP = '--stamp' in OPT
NST = 10
def stamp(a, k):
    if not DO_STAMP: return
    a(f"s_memtime s[{72+2*k}:{73+2*k}]")
    if k == 0: a("s_memrealtime s[94:95]")
def stamp_flush(a):
    if not DO_STAMP: return
    a("s_memrealtime s[96:97]")
    a(f"s_memtime s[{72+2*NST}:{73+2*NST}]")
    a("s_waitcnt lgkmcnt(0)")
    a("v_lshrrev_b32 v1, 6, v0")
    a("v_lshlrev_b32 v1, 6, v1")
    a("s_lshl_b32 s98, s2, 10")
    a(f"s_add_u32 s98, s98, {STAMP}")
    for k in range(NST + 1):
        a(f"v_mov_b32 v2, s{72+2*k}")
        a(f"buffer_store_dword v2, v1, s[48:51], s98 offen offset:{4*k}")
    a("v_mov_b32 v2, s94")
    a("buffer_store_dword v2, v1, s[48:51], s98 offen offset:56")
    a("v_mov_b32 v2, s96")
    a("buffer_store_dword v2, v1, s[48:51], s98 offen offset:60")

def srd(a, d, p, nbytes):
    a(f"s_mov_b32 s{d}, s{p}")
    a(f"s_and_b32 s{d+1}, s{p+1}, 0xffff")
    a(f"s_mov_b32 s{d+2}, {nbytes}")
    a(f"s_mov_b32 s{d+3}, 0x00020000")

def interleave(a, mf, rd, per_gap):
    rd = list(rd)
    for m in mf:
        a(m)
        for _ in range(per_gap):
            if rd: a(rd.pop(0))
    for r in rd: a(r)
class Cap:
    def __init__(self): self.l = []
    def __call__(self, t): self.l.append(t)

def gelu_pack(a, acc, tmp, dst):
    for i in range(16): a(f"v_mul_f32 v{tmp+i}, v{acc+i}, v{acc+i}")
    for i in range(16): a(f"v_fma_f32 v{tmp+i}, v{tmp+i}, s60, v{tmp+16}")
    for i in range(16): a(f"v_mul_f32 v{tmp+i}, v{tmp+i}, v{acc+i}")
    for i in range(16): a(f"v_exp_f32 v{tmp+i}, v{tmp+i}")
    for i in range(16): a(f"v_add_f32 v{tmp+i}, 1.0, v{tmp+i}")
    for i in range(16): a(f"v_rcp_f32 v{tmp+i}, v{tmp+i}")
    for i in range(16): a(f"v_mul_f32 v{tmp+i}, v{tmp+i}, v{acc+i}")
    for i in range(8): a(f"v_cvt_pk_bf16_f32 v{dst+i}, v{tmp+2*i}, v{tmp+2*i+1}")

SPIN_MAX = 1 << 17
ARR = 23
def poll(a, lab, load, vdst, expect, sleep=2):
    a("s_mov_b32 s64, 0")
    a.label(lab)
    a(load)
    a("s_waitcnt vmcnt(0)")
    a(f"v_cmp_ne_u32 vcc, {expect}, v{vdst}")
    a("s_cmp_eq_u64 vcc, 0")
    a(f"s_cbranch_scc1 {lab}_ok")
    a(f"s_sleep {sleep}")
    a("s_add_u32 s64, s64, 1")
    a(f"s_cmp_lt_u32 s64, {SPIN_MAX}")
    a(f"s_cbranch_scc1 {lab}")
    a.label(lab + "_ok")

def gen():
    a = Asm()
    n = "L"
    a("s_cmp_ge_u32 s2, 256")
    a(f"s_cbranch_scc1 {n}_end")
    stamp(a, 0)
    a("s_load_dwordx16 s[16:31], s[0:1], 0")
    a("s_load_dwordx8 s[32:39], s[0:1], 64")
    a("v_and_b32 v1, 63, v0")
    a("v_lshrrev_b32 v2, 6, v0")
    a("v_readfirstlane_b32 s3, v2")
    a("s_and_b32 s7, s2, 7")
    a("s_lshr_b32 s8, s2, 3")
    a("s_lshr_b32 s4, s7, 1")
    a("s_lshl_b32 s4, s4, 3")
    a("s_and_b32 s9, s8, 7")
    a("s_add_u32 s4, s4, s9")
    a("s_and_b32 s5, s7, 1")
    a("s_lshl_b32 s5, s5, 2")
    a("s_lshr_b32 s10, s8, 3")
    a("s_add_u32 s5, s5, s10")
    a("s_lshl_b32 s66, s5, 2")
    a("s_and_b32 s67, s4, 3")
    a("s_add_u32 s66, s66, s67")
    a("s_lshr_b32 s67, s4, 2")
    a("s_lshl_b32 s10, s10, 1")
    a("s_add_u32 s6, s9, s10")
    a("s_and_b32 s6, s6, 7")
    a("v_and_b32 v3, 31, v1")
    a("v_lshrrev_b32 v4, 5, v1")
    a("s_cmp_lt_u32 s3, 4")
    a(f"s_cbranch_scc1 {n}_A")
    a("s_cmp_lt_u32 s3, 8")
    a(f"s_cbranch_scc1 {n}_B")
    a("s_sub_u32 s7, s3, 8")
    a("v_lshrrev_b32 v5, 3, v1")
    a("v_lshlrev_b32 v5, 10, v5")
    a("v_and_b32 v6, 7, v1")
    a("v_lshrrev_b32 v7, 4, v1")
    a("v_xor_b32 v7, v6, v7")
    a("v_lshl_add_u32 v8, v7, 4, v5")
    a("v_xor_b32 v7, 4, v7")
    a("v_lshl_add_u32 v9, v7, 4, v5")
    a("v_add_u32 v9, 7168, v9")
    a("v_lshrrev_b32 v5, 3, v1")
    a("v_mul_u32_u24 v10, 3072, v5")
    a("v_bfe_u32 v7, v1, 4, 1")
    a("v_lshlrev_b32 v7, 2, v7")
    a("v_xor_b32 v7, v6, v7")
    a("v_lshl_add_u32 v10, v7, 4, v10")
    a("s_lshl_b32 s9, s6, 3")
    a("v_add_u32 v5, s9, v1")
    a("v_and_b32 v5, 63, v5")
    a("v_lshlrev_b32 v11, 4, v5")
    a("s_lshl_b32 s10, s4, 16")
    a("s_lshl_b32 s9, s7, 14")
    a("s_add_u32 s10, s10, s9")
    a("s_mul_i32 s11, s7, 24576")
    a("s_lshl_b32 s9, s5, 7")
    a("s_add_u32 s11, s11, s9")
    a("s_mul_i32 s12, s5, 448")
    a("s_lshl_b32 s13, s7, 11")
    a("s_mul_i32 s14, s7, 3072")
    a("s_mul_i32 s8, s7, 3")
    a("s_min_u32 s9, s7, 2")
    a("s_add_u32 s8, s8, s9")
    a("s_lshl_b32 s15, s8, 10")
    a("s_waitcnt lgkmcnt(0)")
    srd(a, 40, P_X, 2048 * 512 * 2)
    srd(a, 44, P_WQKV, 512 * 1536 * 2)
    def late_setup():
        srd(a, 48, P_WS, WS_SIZE)
        srd(a, 52, P_W1, 512 * 1792 * 2)
        srd(a, 68, P_DBG, 256)
        for k in range(4):
            a(f"s_add_u32 s9, s8, {k}")
            a("s_lshl_b32 s9, s9, 6")
            a("v_add_u32 v5, s9, v1")
            a("v_mul_u32_u24 v6, 2341, v5")
            a("v_lshrrev_b32 v6, 16, v6")
            a("v_mul_u32_u24 v7, 28, v6")
            a("v_sub_u32 v7, v5, v7")
            a("v_mul_u32_u24 v6, 3584, v6")
            a(f"v_lshl_add_u32 v{12+k}, v7, 4, v6")
            if k: a(f"v_subrev_u32 v{12+k}, {k*1024}, v{12+k}")
    a("s_cmp_ge_u32 s7, 2")
    a(f"s_cbranch_scc1 {n}_C1")
    for var in range(2):
        if var == 1: a.label(f"{n}_C1")
        np1 = 4 - var
        vm = VmTracker()
        def issueX(q):
            a(f"s_add_u32 s60, s6, {q}")
            a("s_and_b32 s60, s60, 7")
            a("s_lshl_b32 s60, s60, 7")
            a("s_add_u32 s60, s60, s10")
            a(f"s_add_u32 m0, s13, {q*8192}")
            for jj in range(2):
                a(f"buffer_load_dwordx4 v{8+jj}, s[40:43], s60 offen offset:{jj*1024} lds"); vm.issue(('x', q))
        def issueW(p):
            slot = WBASE + (p % NS) * SLOT
            pp = p & 15
            a("s_lshl_b32 s61, s6, 1")
            a(f"s_add_u32 s61, s61, {pp}")
            a("s_and_b32 s61, s61, 15")
            if p < 16:
                a("s_mul_i32 s61, s61, 98304")
                a(f"s_add_u32 m0, s14, {slot}")
                a("s_add_u32 s61, s61, s11")
                for sg in range(3):
                    a(f"buffer_load_dwordx4 v10, s[44:47], s61 offen offset:{sg*1024} lds"); vm.issue(('w', p))
            else:
                a("s_mul_i32 s61, s61, 114688")
                a(f"s_add_u32 m0, s15, {slot}")
                a("s_add_u32 s61, s61, s12")
                for k in range(np1):
                    a(f"buffer_load_dwordx4 v{12+k}, s[52:55], s61 offen offset:{k*1024} lds"); vm.issue(('w', p))
        stamp(a, 1)
        issueX(0)
        if var == 1:
            srd(a, 56, P_GW, 1024)
            a(f"s_mov_b32 m0, {GWB}")
            a("buffer_load_dwordx4 v11, s[56:59], 0 offen lds"); vm.issue('g')
        issueW(0); issueW(1); issueX(1); issueW(2)
        late_setup()
        nx = 2; nw = 3
        for p in range(32):
            a(f"s_waitcnt vmcnt({vm.wait_for(('w', p))})")
            if p == 0: stamp(a, 2)
            a("s_barrier")
            cnt = 0
            while nw < 32 and nw <= p + NS - 1 and cnt < 2:
                if nx < 8 and 2 * nx <= nw: issueX(nx); nx += 1
                issueW(nw); nw += 1; cnt += 1
        if var == 0:
            a("s_cmp_lg_u32 s7, 0")
            a(f"s_cbranch_scc1 {n}_Cdone")
            a("s_lshl_b32 s9, s5, 5")
            a("s_add_u32 s9, s9, s4")
            a("s_lshl_b32 s9, s9, 7")
            a(f"s_add_u32 s9, s9, {GO}")
            a("v_mov_b32 v5, 0")
            a("s_mov_b64 exec, 1")
            stamp(a, 3)
            poll(a, f"{n}_pg", "buffer_load_dword v6, v5, s[48:51], s9 offen sc1", 6, 1, sleep=1)
            a("s_mov_b64 exec, -1")
            a(f"s_branch {n}_Cdone")
    a.label(f"{n}_Cdone")
    a("s_sub_u32 s7, s3, 4")
    a("s_mov_b32 s28, 1")
    a(f"s_branch {n}_attn")

    def xaddr(rt_sreg, base):
        a("v_bfe_u32 v5, v3, 1, 3")
        a("v_lshlrev_b32 v6, 7, v3")
        if rt_sreg is not None:
            a(f"s_lshl_b32 s9, {rt_sreg}, 12")
            a("v_add_u32 v6, s9, v6")
        for s in range(4):
            a(f"v_add_u32 v7, {2*s}, v4")
            a("v_xor_b32 v7, v7, v5")
            a(f"v_lshl_add_u32 v{base+s}, v7, 4, v6")
    a.label(f"{n}_A")
    a("s_and_b32 s7, s3, 1")
    a("s_lshr_b32 s8, s3, 1")
    XA = 8
    xaddr("s7", XA)
    a("v_bfe_u32 v5, v1, 2, 2")
    a("v_mul_u32_u24 v6, 3072, v4")
    a("v_lshl_add_u32 v6, v5, 7, v6")
    a("v_lshrrev_b32 v5, 1, v5")
    a("v_xor_b32 v5, s8, v5")
    a("v_lshl_add_u32 v6, v5, 6, v6")
    a("v_bfe_u32 v5, v1, 4, 1")
    a("v_lshl_add_u32 v6, v5, 5, v6")
    a("v_and_b32 v5, 3, v1")
    a("v_lshl_add_u32 v6, v5, 3, v6")
    a(f"v_add_u32 v12, {WBASE}, v6")
    a(f"v_add_u32 v13, {WBASE + 4*SLOT}, v6")
    a("s_waitcnt lgkmcnt(0)")
    srd(a, 48, P_WS, WS_SIZE)
    srd(a, 68, P_DBG, 256)
    a("s_cmp_lg_u32 s3, 0")
    a(f"s_cbranch_scc1 {n}_Az")
    a("s_lshl_b32 s9, s4, 7")
    a("s_lshl_b32 s10, s5, 4")
    a("s_add_u32 s9, s9, s10")
    a(f"s_add_u32 s9, s9, {F2}")
    a("v_lshl_add_u32 v5, v1, 2, s9")
    a("s_lshl_b32 s9, s67, 10")
    a("s_lshl_b32 s10, s66, 2")
    a("s_add_u32 s9, s9, s10")
    a(f"s_add_u32 s9, s9, {F3 - 4*128}")
    a("v_lshl_add_u32 v6, v1, 7, s9")
    a("v_cmp_gt_u32 vcc, 4, v1")
    a("v_cndmask_b32 v5, v6, v5, vcc")
    a("s_lshl_b32 s9, s5, 5")
    a("s_add_u32 s9, s9, s4")
    a("s_lshl_b32 s9, s9, 7")
    a(f"s_add_u32 s9, s9, {GO}")
    a("s_sub_u32 s9, s9, 48")
    a("v_lshl_add_u32 v6, v1, 2, s9")
    a("v_cmp_le_u32 vcc, 12, v1")
    a("v_cndmask_b32 v5, v5, v6, vcc")
    a("v_mov_b32 v6, 0")
    a(f"v_mov_b32 v7, {CNT}")
    a("v_lshl_add_u32 v7, v1, 2, v7")
    a("s_mov_b64 exec, 0x3fff")
    a("buffer_store_dword v6, v5, s[48:51], 0 offen sc1")
    a("ds_write_b32 v7, v6")
    a("s_mov_b64 exec, -1")
    a.label(f"{n}_Az")
    FR = [16, 48]; ACC = [80, 96, 112]
    def readsA(p, a):
        f = FR[p & 1]; sl = p % NS
        wb = 12 if sl < 4 else 13; wo = (sl % 4) * SLOT
        for s in range(2):
            a(f"ds_read_b128 {vr(f+16*s,4)}, v{XA + 2*(p&1) + s} offset:{(p>>1)*8192}")
            for g in range(3):
                for t in range(2):
                    a(f"ds_read_b64_tr_b16 {vr(f+16*s+4+4*g+2*t,2)}, v{wb} offset:{wo + s*6144 + g*1024 + t*512}")
    def mfA(p, a):
        f = FR[p & 1]
        for s in range(2):
            c = (lambda x: "0") if (p == 0 and s == 0) else (lambda x: vr(x, 16))
            x = f + 16 * s
            a(f"{MF} {vr(ACC[1],16)}, {vr(x+8,4)}, {vr(x,4)}, {c(ACC[1])}")
            a(f"{MF} {vr(ACC[2],16)}, {vr(x,4)}, {vr(x+12,4)}, {c(ACC[2])}")
            a(f"{MF} {vr(ACC[0],16)}, {vr(x+4,4)}, {vr(x,4)}, {c(ACC[0])}")
    for p in range(16):
        a("s_barrier")
        if p == 0: stamp(a, 1)
        r = Cap(); m = Cap()
        readsA(p, r)
        if p: mfA(p - 1, m)
        interleave(a, m.l, r.l, 3)
        a("s_waitcnt lgkmcnt(0)")
    a("s_barrier")
    stamp(a, 2)
    mfA(15, a)
    a("s_lshl_b32 s9, s4, 1")
    a("s_add_u32 s9, s9, s7")
    a("s_lshl_b32 s10, s5, 1")
    a("s_add_u32 s10, s10, s8")
    a("s_lshl_b32 s10, s10, 17")
    a("s_lshl_b32 s9, s9, 10")
    a("s_add_u32 s10, s10, s9")
    a("v_lshlrev_b32 v5, 4, v1")
    a("v_bfe_u32 v6, v1, 4, 1")
    a("v_lshlrev_b32 v6, 16, v6")
    a("v_lshl_add_u32 v6, v4, 8, v6")
    a("v_and_b32 v7, 15, v1")
    a("v_lshl_add_u32 v6, v7, 4, v6")
    a("s_barrier")
    for i in range(8): a(f"v_cvt_pk_bf16_f32 v{24+i}, v{ACC[1]+2*i}, v{ACC[1]+2*i+1}")
    a(f"s_add_u32 s11, s10, {KF}")
    a("buffer_store_dwordx4 v[24:27], v5, s[48:51], s11 offen sc1")
    a(f"s_add_u32 s11, s10, {KF+65536}")
    a("buffer_store_dwordx4 v[28:31], v5, s[48:51], s11 offen sc1")
    a("s_barrier")
    for i in range(8): a(f"v_cvt_pk_bf16_f32 v{32+i}, v{ACC[2]+2*i}, v{ACC[2]+2*i+1}")
    a(f"s_add_u32 s11, s10, {VF}")
    a("buffer_store_dwordx4 v[32:35], v6, s[48:51], s11 offen sc1")
    a("buffer_store_dwordx4 v[36:39], v6, s[48:51], s11 offen offset:512 sc1")
    a("s_barrier")
    sc = f32hex(0.25 * LOG2E)
    for i in range(16): a(f"v_mul_f32 v{ACC[0]+i}, {sc}, v{ACC[0]+i}")
    for i in range(8): a(f"v_cvt_pk_bf16_f32 v{16+i}, v{ACC[0]+2*i}, v{ACC[0]+2*i+1}")
    a(f"s_add_u32 s11, s10, {QF}")
    a("buffer_store_dwordx4 v[16:19], v5, s[48:51], s11 offen sc1")
    a(f"s_add_u32 s11, s10, {QF+65536}")
    a("buffer_store_dwordx4 v[20:23], v5, s[48:51], s11 offen sc1")
    for p in range(20, ARR + 1):
        if p == ARR: a("s_waitcnt vmcnt(0)")
        a("s_barrier")
    stamp(a, 3)
    a(f"s_mov_b32 s13, {ARR + 1}")
    a("s_mov_b32 s14, 1")
    a("s_cmp_lg_u32 s3, 0")
    a(f"s_cbranch_scc1 {n}_Abl")
    a("s_mov_b32 s14, 0")
    a("s_and_b32 s15, s5, 3")
    a("s_mul_i32 s15, s15, 6")
    a("s_lshl_b32 s11, 1, s15")
    a("s_lshr_b32 s12, s5, 2")
    a("s_lshl_b32 s12, s12, 7")
    a("v_mov_b32 v5, 0")
    a("v_mov_b32 v6, s11")
    a("v_mov_b32 v7, 1")
    a("s_mov_b64 exec, 1")
    a("buffer_atomic_add_x2 v[6:7], v5, s[68:71], s12 offen sc0 sc1")
    a("s_mov_b64 exec, -1")
    a.label(f"{n}_Abl")
    a("s_cmp_ge_u32 s13, 32")
    a(f"s_cbranch_scc1 {n}_Alast")
    a("s_barrier")
    a("s_add_u32 s13, s13, 1")
    a("s_cmp_lg_u32 s14, 0")
    a(f"s_cbranch_scc1 {n}_Abl")
    a("v_readfirstlane_b32 s9, v6")
    a("s_cmp_eq_u32 s9, s11")
    a(f"s_cbranch_scc1 {n}_Abl")
    a.label(f"{n}_Ahandle")
    a("s_waitcnt vmcnt(0)")
    a("s_mov_b32 s14, 1")
    a("v_readfirstlane_b32 s9, v6")
    a("v_readfirstlane_b32 s10, v7")
    a("s_lshr_b32 s9, s9, s15")
    a("s_and_b32 s9, s9, 63")
    a("s_cmp_lg_u32 s9, 31")
    a(f"s_cbranch_scc1 {n}_Abl")
    a("s_lshl_b32 s9, s5, 12")
    a(f"s_add_u32 s9, s9, {GO}")
    a("v_lshlrev_b32 v5, 7, v1")
    a("v_mov_b32 v6, 1")
    a("s_mov_b32 exec_hi, 0")
    a("buffer_store_dword v6, v5, s[48:51], s9 offen sc1")
    a("s_mov_b64 exec, -1")
    a("s_cmp_lg_u32 s10, 127")
    a(f"s_cbranch_scc1 {n}_Abl")
    a("s_mov_b32 s14, 2")
    a(f"s_branch {n}_Abl")
    a.label(f"{n}_Alast")
    a("s_cmp_eq_u32 s14, 0")
    a(f"s_cbranch_scc1 {n}_Ahandle")
    a("s_mov_b32 s28, s14")
    a("s_mov_b32 s7, s3")
    a.label(f"{n}_attn")
    Q = 4; Kf = [8, 12]; Vf = [16, 24]; Cn = 32; S = [48, 64]; P = 80; O = 88
    VL16 = 104; VKA = 105; VVA = 106; VG = 107; VM = 108; VT = 109; VK = 110; VV = 111; VC = 112; VONE = 113; VT2 = 114
    a(f"v_lshlrev_b32 v{VL16}, 4, v1")
    a(f"v_mov_b32 v{VKA}, v{VL16}")
    a(f"v_and_b32 v{VT}, 15, v1")
    a(f"v_lshlrev_b32 v{VT}, 4, v{VT}")
    a(f"v_lshrrev_b32 v{VT2}, 5, v1")
    a(f"v_lshl_add_u32 v{VT}, v{VT2}, 8, v{VT}")
    a(f"v_add_u32 v{VVA}, 65536, v{VT}")
    a(f"v_and_b32 v{VT}, 27, v1")
    a(f"v_cmp_eq_u32 vcc, 16, v{VT}")
    a(f"v_mov_b32 v{VT}, 0x3f803f80")
    a(f"v_cndmask_b32 v{VT}, 0, v{VT}, vcc")
    for b in range(2):
        for i in range(8): a(f"v_mov_b32 v{Vf[b]+i}, v{VT}")
    a(f"v_mov_b32 v{VC}, {CNT}")
    a(f"v_mov_b32 v{VONE}, 1")
    a(f"v_and_b32 v{VT}, 31, v1")
    a(f"v_lshlrev_b32 v{VT}, 2, v{VT}")
    a("s_mov_b32 s20, 0x0000ffff")
    a("s_mov_b32 s21, 0x0000ffff")
    a("s_mov_b32 s22, 0")
    a("s_and_b32 s9, s7, 1")
    a("s_lshr_b32 s10, s7, 1")
    a("s_lshl_b32 s10, s10, 10")
    a("s_lshl_b32 s11, s9, 16")
    a("s_add_u32 s11, s11, s10")
    a("s_lshl_b32 s12, s9, 21")
    a("s_add_u32 s12, s12, s10")
    a("s_lshl_b32 s13, s66, 16")
    a("s_add_u32 s12, s12, s13")
    a(f"s_add_u32 s12, s12, {KF}")
    a("s_lshl_b32 s14, s67, 3")
    a("s_add_u32 s14, s14, s7")
    a("s_lshl_b32 s15, s14, 10")
    a("s_add_u32 s15, s15, s13")
    a("s_lshr_b32 s23, s66, 2")
    a("s_lshl_b32 s23, s23, 13")
    a("s_lshl_b32 s24, s14, 7")
    a("s_add_u32 s23, s23, s24")
    a(f"s_add_u32 s23, s23, {G8}")
    a("s_barrier")
    stamp(a, 4)
    def dma_next():
        a("s_mov_b32 m0, s11")
        a("s_add_u32 s11, s11, 4096")
        a(f"buffer_load_dwordx4 v{VL16}, s[48:51], s12 offen sc1 lds")
        a("s_add_u32 s12, s12, 4096")
    dma_next()
    a(f"buffer_load_dwordx4 {vr(Q,4)}, v{VL16}, s[48:51], s15 offen sc1")
    dma_next(); dma_next(); dma_next()
    a(f"buffer_load_dword v{VG}, v{VT}, s[48:51], s23 offen sc1")
    def lsignal(vmn):
        a(f"s_waitcnt vmcnt({vmn})")
        a("s_mov_b64 exec, 1")
        a(f"ds_add_u32 v{VC}, v{VONE}")
        a("s_mov_b64 exec, -1")
    def lwait(lab, off, target):
        a("s_mov_b32 s64, 0")
        a.label(lab)
        a(f"ds_read_b32 v{VT2}, v{VC} offset:{off}")
        a("s_add_u32 s64, s64, 1")
        a("s_waitcnt lgkmcnt(0)")
        a(f"v_readfirstlane_b32 s25, v{VT2}")
        a("s_lshr_b32 s65, s64, 16")
        a("s_add_u32 s25, s25, s65")
        a(f"s_cmp_lt_u32 s25, {target}")
        a(f"s_cbranch_scc1 {lab}")
    a("s_cmp_lg_u32 s28, 2")
    a(f"s_cbranch_scc1 {n}_no2")
    a(f"v_mov_b32 v{VT2}, 1")
    a(f"v_mov_b32 v{VK}, 64")
    a("s_mov_b64 exec, 1")
    a(f"buffer_atomic_add v{VT2}, v{VK}, s[68:71], 0 offen sc0 sc1")
    a("s_mov_b64 exec, -1")
    a("s_waitcnt vmcnt(0)")
    a(f"v_readfirstlane_b32 s9, v{VT2}")
    a("s_cmp_lg_u32 s9, 1")
    a(f"s_cbranch_scc1 {n}_no2")
    a(f"v_lshlrev_b32 v{VK}, 7, v1")
    for k in range(4):
        a(f"s_mov_b32 s9, {GO + k*8192}")
        a(f"buffer_store_dword v{VONE}, v{VK}, s[48:51], s9 offen offset:4 sc1")
    a("s_waitcnt vmcnt(0)")
    a.label(f"{n}_no2")
    lsignal(3)
    lwait(f"{n}_s0", 0, 8)
    a(f"v_add_u32 v{VC}, 4, v{VC}")
    stamp(a, 5)
    a(f"ds_read_b128 {vr(Kf[0],4)}, v{VKA}")
    a("s_waitcnt lgkmcnt(0)")
    s = S[0]
    a(f"{MF} {vr(s,16)}, {vr(Kf[0],4)}, {vr(Q,4)}, 0")
    a(f"v_max3_f32 v{VM}, v{s}, v{s+1}, v{s+2}")
    for i in range(3, 15, 2): a(f"v_max3_f32 v{VM}, v{VM}, v{s+i}, v{s+i+1}")
    a(f"v_max_f32 v{VM}, v{VM}, v{s+15}")
    lsignal(1)
    a.label(f"{n}_setup")
    a(f"ds_read_b128 {vr(Kf[0],4)}, v{VKA}")
    a(f"ds_read_b128 {vr(Kf[1],4)}, v{VKA} offset:1024")
    a("s_mov_b64 exec, s[20:21]")
    a(f"ds_read_b128 {vr(Vf[0],4)}, v{VVA}")
    a(f"ds_read_b128 {vr(Vf[0]+4,4)}, v{VVA} offset:512")
    a("s_mov_b64 exec, -1")
    a(f"v_mov_b32 v{VT}, v{VM}")
    a(f"v_permlane32_swap_b32 v{VT}, v{VM}")
    a(f"v_max_f32 v{VM}, v{VM}, v{VT}")
    for i in range(16): a(f"v_sub_f32 v{Cn+i}, 0, v{VM}")
    for i in range(16): a(f"v_mov_b32 v{O+i}, 0")
    for i in range(4): a(f"v_mov_b32 v{P+4+i}, 0")
    a(f"v_mov_b32 v{VK}, v{VKA}")
    a(f"v_mov_b32 v{VV}, v{VVA}")
    a("s_waitcnt lgkmcnt(0)")
    a(f"{MF} {vr(S[0],16)}, {vr(Kf[0],4)}, {vr(Q,4)}, {vr(Cn,16)}")
    a("s_mov_b32 s26, 0")
    a("s_mov_b32 s27, s22")
    a("s_nop 7")
    a("s_nop 1")
    U = 4
    a.label(f"{n}_loop")
    a("s_cmp_eq_u32 s27, 0")
    a(f"s_cbranch_scc1 {n}_side")
    a.label(f"{n}_body")
    for u in range(U):
        if u in (0, U - 1):
            a("s_cmp_lt_u32 s7, 4")
            a(f"s_cbranch_scc1 {n}_pt{u}")
            a(f"s_setprio {1 if u == 0 else 0}")
            a.label(f"{n}_pt{u}")
        kb = u & 1
        s = S[u & 1]; sn = S[(u + 1) & 1]; p = P
        ex = [f"v_exp_f32 v{s+i}, v{s+i}" for i in range(16)]
        cv = [f"v_cvt_pk_bf16_f32 v{p+i}, v{s+2*i}, v{s+2*i+1}" for i in range(8)]
        pv2p = f"{MF} {vr(O,16)}, {vr(Vf[kb^1]+4,4)}, {vr(p+4,4)}, {vr(O,16)}"
        pv1 = f"{MF} {vr(O,16)}, {vr(Vf[kb],4)}, {vr(p,4)}, {vr(O,16)}"
        smf = f"{MF} {vr(sn,16)}, {vr(Kf[kb^1],4)}, {vr(Q,4)}, {vr(Cn,16)}"
        ldv = ["s_mov_b64 exec, s[20:21]",
               f"ds_read_b128 {vr(Vf[kb^1],4)}, v{VV} offset:{(u+1)*1024}",
               f"ds_read_b128 {vr(Vf[kb^1]+4,4)}, v{VV} offset:{(u+1)*1024+512}",
               "s_mov_b64 exec, -1"]
        ldk = [f"ds_read_b128 {vr(Kf[kb],4)}, v{VK} offset:{(u+2)*1024}"]
        seq = ex[0:2] + [pv2p] + ldv + ex[2:4] + [cv[0]] + ex[4:6] + [cv[1], "s_waitcnt lgkmcnt(2)"] + ex[6:8] + [smf] + ldk
        seq += [cv[2]] + ex[8:10] + [cv[3]] + ex[10:13] + [cv[4], pv1] + ex[13:14] + [cv[5]] + ex[14:16] + [cv[6], cv[7]]
        for x in seq: a(x)
    a(f"v_add_u32 v{VK}, {U*1024}, v{VK}")
    a(f"v_add_u32 v{VV}, {U*1024}, v{VV}")
    a("s_add_u32 s26, s26, 1")
    a(f"s_cmp_lt_u32 s26, {64//U}")
    a(f"s_cbranch_scc1 {n}_loop")
    a(f"{MF} {vr(O,16)}, {vr(Vf[1]+4,4)}, {vr(P+4,4)}, {vr(O,16)}")
    stamp(a, 6)
    a("s_waitcnt lgkmcnt(0)")
    a("s_cmp_eq_u32 s22, 1")
    a(f"s_cbranch_scc1 {n}_fin")
    a(f"v_add_f32 v{VT}, |v{O}|, |v{O+1}|")
    for i in range(2, 8): a(f"v_add_f32 v{VT}, v{VT}, |v{O+i}|")
    a(f"v_mul_f32 v{VT}, 0, v{VT}")
    a(f"v_add_f32 v{VT}, v{VT}, v{O+8}")
    a(f"v_mov_b32 v{VT2}, 0x5d800000")
    a(f"v_cmp_nle_f32 vcc, v{VT}, v{VT2}")
    a("s_cmp_eq_u64 vcc, 0")
    a(f"s_cbranch_scc1 {n}_fin")
    a("s_mov_b32 s22, 1")
    a(f"v_mov_b32 v{VK}, v{VKA}")
    a(f"v_mov_b32 v{VM}, 0xff800000")
    a("s_mov_b64 exec, s[20:21]")
    for i in range(4): a(f"v_mov_b32 v{Vf[1]+4+i}, 0")
    a("s_mov_b64 exec, -1")
    a("s_mov_b32 s26, 0")
    a.label(f"{n}_mx")
    a(f"ds_read_b128 {vr(Kf[0],4)}, v{VK}")
    a("s_waitcnt lgkmcnt(0)")
    s = S[0]
    a(f"{MF} {vr(s,16)}, {vr(Kf[0],4)}, {vr(Q,4)}, 0")
    for i in range(0, 16, 2): a(f"v_max3_f32 v{VM}, v{VM}, v{s+i}, v{s+i+1}")
    a(f"v_add_u32 v{VK}, 1024, v{VK}")
    a("s_add_u32 s26, s26, 1")
    a("s_cmp_lt_u32 s26, 64")
    a(f"s_cbranch_scc1 {n}_mx")
    a(f"s_branch {n}_setup")
    a.label(f"{n}_side")
    a("s_cmp_eq_u32 s26, 1")
    a(f"s_cbranch_scc1 {n}_sd1")
    a("s_cmp_eq_u32 s26, 3")
    a(f"s_cbranch_scc1 {n}_sd3")
    a("s_cmp_eq_u32 s26, 7")
    a(f"s_cbranch_scc1 {n}_sd7")
    a(f"s_branch {n}_body")
    a.label(f"{n}_sd1")
    lwait(f"{n}_s1", 0, 8)
    stamp(a, 7)
    a(f"s_branch {n}_body")
    a.label(f"{n}_sd3")
    if '--stampA' in OPT: stamp(a, 1)
    lwait(f"{n}_s2", 4, 4)
    stamp(a, 8)
    a(f"s_branch {n}_body")
    a.label(f"{n}_sd7")
    if '--stampA' in OPT: stamp(a, 2)
    lwait(f"{n}_s3", 8, 4)
    stamp(a, 9)
    a("s_mov_b32 s27, 1")
    a(f"s_branch {n}_body")
    a.label(f"{n}_fin")
    a("s_nop 11")
    a(f"v_rcp_f32 v{VT}, v{O+8}")
    a("s_waitcnt vmcnt(0)")
    a(f"v_mul_f32 v{VT}, v{VT}, v{VG}")
    for i in range(8): a(f"v_mul_f32 v{O+i}, v{O+i}, v{VT}")
    for i in range(4): a(f"v_cvt_pk_bf16_f32 v{P+i}, v{O+2*i}, v{O+2*i+1}")
    a("s_lshl_b32 s15, s14, 15")
    a("s_lshl_b32 s9, s66, 10")
    a("s_add_u32 s15, s15, s9")
    a(f"s_add_u32 s15, s15, {OF}")
    a(f"buffer_store_dwordx4 {vr(P,4)}, v{VL16}, s[48:51], s15 offen sc1")
    a("s_lshl_b32 s15, s14, 7")
    a("s_lshl_b32 s9, s66, 2")
    a("s_add_u32 s15, s15, s9")
    a(f"s_add_u32 s15, s15, {F3}")
    a(f"v_mov_b32 v{VT}, 0")
    a("s_waitcnt vmcnt(0)")
    a("s_mov_b64 exec, 1")
    a(f"buffer_store_dword v{VONE}, v{VT}, s[48:51], s15 offen sc1")
    a("s_mov_b64 exec, -1")
    stamp_flush(a)
    a("s_endpgm")

    a.label(f"{n}_B")
    a("s_and_b32 s12, s3, 3")
    a("s_and_b32 s7, s3, 1")
    a("s_bfe_u32 s8, s3, 0x10001")
    XA = 8
    xaddr(None, XA)
    BACC = [96, 112, 128, 144]; BRAW = [36, 44, 80, 88]
    a("s_mul_i32 s9, s5, 448")
    a("s_mul_i32 s10, s8, 192")
    a("s_add_u32 s11, s9, s10")
    a("v_bfe_u32 v5, v1, 2, 2")
    a("v_lshl_add_u32 v5, v4, 3, v5")
    a("v_mul_u32_u24 v6, 448, v5")
    a("v_bfe_u32 v5, v1, 4, 1")
    a("v_lshl_add_u32 v6, v5, 5, v6")
    a("v_and_b32 v5, 3, v1")
    a("v_lshl_add_u32 v6, v5, 3, v6")
    a("v_add_u32 v6, s10, v6")
    a(f"v_add_u32 v12, {WBASE}, v6")
    a(f"v_add_u32 v13, {WBASE + 4*SLOT}, v6")
    a("v_lshlrev_b32 v14, 4, v4")
    a(f"v_add_u32 v14, {GWB}, v14")
    a("v_lshlrev_b32 v5, 3, v4")
    a("s_waitcnt lgkmcnt(0)")
    srd(a, 48, P_WS, WS_SIZE)
    srd(a, 52, P_B1, 1792 * 2)
    def bias_load():
        for k in range(4):
            for aa in range(4):
                a(f"buffer_load_dwordx2 {vr(BRAW[k]+2*aa,2)}, v5, s[52:55], s11 offen offset:{k*64+aa*16}")
    def bias_unpack(ks):
        for k in ks:
            for aa in range(4):
                for e in range(2):
                    src = BRAW[k] + 2 * aa + e
                    a(f"v_lshlrev_b32 v{BACC[k]+4*aa+2*e}, 16, v{src}")
                    a(f"v_and_b32 v{BACC[k]+4*aa+2*e+1}, 0xffff0000, v{src}")
    GF = [16, 24]; GA = 64
    a("s_cmp_eq_u32 s8, 1")
    a("s_cselect_b64 vcc, -1, 0")
    a("s_lshl_b32 s9, s7, 12")
    for q in range(2):
        a(f"v_cndmask_b32 v{32+q}, v{XA+2*q}, v{XA+2*q+1}, vcc")
        a(f"v_add_u32 v{32+q}, s9, v{32+q}")
    a("s_lshl_b32 s9, s8, 5")
    a("v_add_u32 v14, s9, v14")
    for p in range(17):
        if p < 16:
            a("s_barrier")
            f = GF[p & 1]
            a(f"ds_read_b128 {vr(f,4)}, v14 offset:{p*64}")
            a(f"ds_read_b128 {vr(f+4,4)}, v{32+(p&1)} offset:{(p>>1)*8192}")
        if p > 0:
            f = GF[(p - 1) & 1]
            c = "0" if p == 1 else vr(GA, 16)
            a(f"{MF} {vr(GA,16)}, {vr(f,4)}, {vr(f+4,4)}, {c}")
        if p == 2: bias_load()
        if p == 13: a("s_waitcnt vmcnt(0)"); bias_unpack([0, 1])
        if p == 14: bias_unpack([2, 3])
        if p < 16: a("s_waitcnt lgkmcnt(0)")
    a("s_lshl_b32 s9, s12, 8")
    a("v_lshlrev_b32 v5, 2, v1")
    a(f"v_add_u32 v15, {GRED}, v5")
    a("v_add_u32 v5, s9, v15")
    a("s_lshl_b32 s9, s7, 12")
    for s in range(4): a(f"v_add_u32 v{XA+s}, s9, v{XA+s}")
    a(f"ds_write_b32 v5, v{GA}")
    a("s_waitcnt lgkmcnt(0)")
    def gate_finish():
        for w in range(4): a(f"ds_read_b32 v{160+w}, v15 offset:{w*256}")
        a("s_waitcnt lgkmcnt(0)")
        for rt in range(2):
            a(f"v_add_f32 v{160+rt}, v{160+rt}, v{162+rt}")
            a(f"v_mul_f32 v{160+rt}, {f32hex(-LOG2E)}, v{160+rt}")
            a(f"v_exp_f32 v{160+rt}, v{160+rt}")
            a(f"v_add_f32 v{160+rt}, 1.0, v{160+rt}")
            a(f"v_rcp_f32 v{160+rt}, v{160+rt}")
        a("v_cmp_gt_u32 vcc, 32, v1")
        a("v_cndmask_b32 v5, v161, v160, vcc")
        a("v_lshlrev_b32 v6, 2, v1")
        a("s_lshl_b32 s9, s5, 13")
        a("s_lshl_b32 s11, s4, 8")
        a("s_add_u32 s9, s9, s11")
        a(f"s_add_u32 s9, s9, {G8}")
        a("buffer_store_dword v5, v6, s[48:51], s9 offen sc1")
        a("v_sub_f32 v160, 1.0, v160")
        a("v_sub_f32 v161, 1.0, v161")
    FB = [16, 56]
    def readsB(p, a):
        f = FB[p & 1]; sl = p % NS; pp = p & 15
        wb = 12 if sl < 4 else 13; wo = (sl % 4) * SLOT
        for s in range(2):
            a(f"ds_read_b128 {vr(f+20*s,4)}, v{XA + 2*(pp&1) + s} offset:{(pp>>1)*8192}")
            for k in range(4):
                for t in range(2):
                    a(f"ds_read_b64_tr_b16 {vr(f+20*s+4+4*k+2*t,2)}, v{wb} offset:{wo + s*7168 + t*1792 + k*64}")
    def mfB(p, a):
        f = FB[p & 1]
        for s in range(2):
            for k in range(4):
                a(f"{MF} {vr(BACC[k],16)}, {vr(f+20*s+4+4*k,4)}, {vr(f+20*s,4)}, {vr(BACC[k],16)}")
    for p in range(16, 32):
        if p == ARR: a("s_waitcnt vmcnt(0)")
        a("s_barrier")
        if p == 16: stamp(a, 1)
        r = Cap(); m = Cap()
        readsB(p, r)
        if p > 16:
            mfB(p - 1, m)
            interleave(a, m.l, r.l, 3)
        else:
            for x in r.l[:9]: a(x)
            gate_finish()
            for x in r.l[9:]: a(x)
        a("s_waitcnt lgkmcnt(0)")
    a("s_barrier")
    stamp(a, 2)
    mfB(31, a)
    srd(a, 40, P_W2, 1792 * 512 * 2)
    srd(a, 44, P_WO, 512 * 512 * 2)
    a("v_lshrrev_b32 v5, 3, v1")
    a("v_lshlrev_b32 v8, 10, v5")
    a("v_and_b32 v6, 7, v1")
    a("v_bfe_u32 v7, v1, 4, 1")
    a("v_lshlrev_b32 v7, 2, v7")
    a("v_xor_b32 v7, v6, v7")
    a("v_lshl_add_u32 v8, v7, 4, v8")
    a("v_add_u32 v11, 7168, v8")
    a(f"s_mul_i32 s13, s12, {RSL*2048}")
    a(f"s_add_u32 s13, s13, {RING}")
    a("v_bfe_u32 v5, v1, 2, 2")
    a("v_lshl_add_u32 v6, v4, 2, v5")
    a("v_lshlrev_b32 v6, 7, v6")
    a("v_and_b32 v7, 1, v1")
    a("v_lshl_add_u32 v6, v7, 5, v6")
    a("v_bfe_u32 v7, v1, 4, 1")
    a("v_lshl_add_u32 v6, v7, 4, v6")
    a("v_bfe_u32 v7, v1, 1, 1")
    a("v_lshl_add_u32 v6, v7, 3, v6")
    a("v_add_u32 v6, s13, v6")
    a("v_lshrrev_b32 v5, 1, v5")
    a("v_lshl_add_u32 v9, v5, 6, v6")
    a("v_xor_b32 v5, 1, v5")
    a("v_lshl_add_u32 v10, v5, 6, v6")
    a("v_lshlrev_b32 v5, 4, v1")
    a("s_mul_i32 s14, s12, 458752")
    a("s_lshl_b32 s9, s5, 7")
    a("s_add_u32 s14, s14, s9")
    a("s_lshl_b32 s15, s12, 17")
    a("s_add_u32 s15, s15, s9")
    def wdma(slot, srdn, sreg):
        a(f"s_add_u32 m0, s13, {slot*2048}")
        a(f"buffer_load_dwordx4 v8, s[{srdn}:{srdn+3}], s{sreg} offen lds")
        a(f"buffer_load_dwordx4 v11, s[{srdn}:{srdn+3}], s{sreg} offen offset:1024 lds")
        a(f"s_add_u32 s{sreg}, s{sreg}, 16384")
    a("s_lshl_b32 s62, s7, 16")
    a("s_lshl_b32 s63, s7, 21")
    a("s_lshl_b32 s9, s66, 16")
    a("s_add_u32 s63, s63, s9")
    a(f"s_add_u32 s63, s63, {KF}")
    def kvdma(tile0_expr_shift, tile_base, k4):
        a(f"s_lshl_b32 s61, s8, {tile0_expr_shift + 10}")
        a(f"s_add_u32 s61, s61, {(tile_base + 4*k4)*1024}")
        a("s_add_u32 m0, s61, s62")
        a("s_add_u32 s61, s61, s63")
        for k in range(4):
            a(f"buffer_load_dwordx4 v5, s[48:51], s61 offen offset:{k*1024} sc1 lds")
    def bsignal(off):
        a(f"v_mov_b32 v6, {CNT + off}")
        a("v_mov_b32 v7, 1")
        a("s_mov_b64 exec, 1")
        a("ds_add_u32 v6, v7")
        a("s_mov_b64 exec, -1")
    a(f"s_mov_b32 s60, {f32hex(GELU_C1)}")
    TMP = 16
    a(f"v_mov_b32 v{TMP+16}, {f32hex(GELU_C0)}")
    a("s_lshl_b32 s9, s4, 1")
    a("s_add_u32 s9, s9, s7")
    a("s_mul_i32 s9, s9, 114688")
    a("s_mul_i32 s10, s5, 14336")
    a("s_add_u32 s9, s9, s10")
    a("s_mul_i32 s10, s8, 6144")
    a("s_add_u32 s9, s9, s10")
    a(f"s_add_u32 s9, s9, {HF}")
    a("s_add_u32 s10, s9, 4096")
    a("s_cmp_eq_u32 s8, 1")
    a(f"s_cbranch_scc1 {n}_skip0")
    for k in range(4):
        if k == 1: a.label(f"{n}_skip0")
        dst = 40 + 8 * k
        if k in (1, 2): kvdma(3, 16, k - 1)
        gelu_pack(a, BACC[k], TMP, dst)
        sb = 9 if k < 2 else 10
        a(f"buffer_store_dwordx4 {vr(dst,4)}, v5, s[48:51], s{sb} offen offset:{(k%2)*2048} sc1")
        a(f"buffer_store_dwordx4 {vr(dst+4,4)}, v5, s[48:51], s{sb} offen offset:{(k%2)*2048+1024} sc1")
    stamp(a, 3)
    a("s_setprio 2")
    a("s_lshl_b32 s9, s4, 7")
    a(f"s_add_u32 s9, s9, {F2}")
    a("s_lshl_b32 s10, s5, 4")
    a("s_lshl_b32 s11, s12, 2")
    a("s_add_u32 s10, s10, s11")
    a("v_mov_b32 v6, s10")
    a("v_mov_b32 v7, 1")
    a("s_waitcnt vmcnt(0)")
    a("s_mov_b64 exec, 1")
    a("buffer_store_dword v7, v6, s[48:51], s9 offen sc1")
    a("s_mov_b64 exec, -1")
    bsignal(8)
    for k4 in range(4): kvdma(4, 32, k4)
    for sl in range(RSL): wdma(sl, 40, 14)
    a("s_waitcnt vmcnt(6)")
    bsignal(12)
    a("s_lshl_b32 s10, s5, 5")
    a("s_add_u32 s10, s10, s4")
    a("s_lshl_b32 s10, s10, 7")
    a(f"s_add_u32 s10, s10, {GO + 4}")
    a("v_mov_b32 v6, 0")
    a("s_mov_b64 exec, 1")
    poll(a, f"{n}_pa", "buffer_load_dword v7, v6, s[48:51], s10 offen sc1", 7, 1, sleep=4)
    a("s_mov_b64 exec, -1")
    a("s_lshl_b32 s10, s12, 5")
    a("v_lshl_add_u32 v6, v1, 2, s10")
    a("s_mov_b64 exec, 0xff")
    poll(a, f"{n}_p2", "buffer_load_dword v7, v6, s[48:51], s9 offen sc1", 7, 1, sleep=4)
    a("s_mov_b64 exec, -1")
    stamp(a, 4)
    ACC2 = [96, 112, 128, 144]
    WF = [16, 24]; HD = 6; HB = 32
    a("s_mul_i32 s10, s4, 229376")
    a("s_mul_i32 s11, s12, 28672")
    a("s_add_u32 s10, s10, s11")
    a(f"s_add_u32 s10, s10, {HF}")
    a("s_add_u32 s11, s10, 114688")
    vm = VmTracker()
    def hld(ks):
        for rt in range(2):
            a(f"buffer_load_dwordx4 {vr(HB+8*(ks%HD)+4*rt,4)}, v5, s[48:51], s{10+rt} offen offset:{(ks%4)*1024} sc1"); vm.issue(('h', ks))
        if ks % 4 == 3:
            a("s_add_u32 s10, s10, 4096")
            a("s_add_u32 s11, s11, 4096")
    def trread(ks, dst):
        sl = ks % RSL
        for nt in range(2):
            for t in range(2):
                a(f"ds_read_b64_tr_b16 {vr(dst+4*nt+2*t,2)}, v{9+nt} offset:{sl*2048 + t*1024}")
    for ks in range(HD): hld(ks)
    NK2 = 28
    WOR = 32
    trread(0, WF[0])
    for ks in range(NK2 + 8):
        a("s_waitcnt lgkmcnt(0)")
        nxt = ks + RSL
        if nxt < NK2 + 8:
            wdma(ks % RSL, 40 if nxt < NK2 else 44, 14 if nxt < NK2 else 15); vm.issue(('w', nxt)); vm.issue(('w', nxt))
        if ks + 1 < NK2 + 8:
            w = vm.wait_for(('w', ks + 1))
            if ks < NK2:
                w2 = vm.wait_for(('h', ks))
                if w2 is not None: w = w2
            if w is not None: a(f"s_waitcnt vmcnt({w})")
            if ks + 1 < NK2: trread(ks + 1, WF[(ks + 1) & 1])
        if ks < NK2:
            f = WF[ks & 1]; hb = HB + 8 * (ks % HD)
            for nt in range(2):
                for rt in range(2):
                    c = "0" if ks == 0 else vr(ACC2[2*nt+rt], 16)
                    a(f"{MF} {vr(ACC2[2*nt+rt],16)}, {vr(f+4*nt,4)}, {vr(hb+4*rt,4)}, {c}")
            if ks + HD < NK2: hld(ks + HD)
        if NK2 <= ks + 1 < NK2 + 8: trread(ks + 1, WOR + 8 * (ks + 1 - NK2))
    stamp(a, 5)
    for nt in range(2):
        for rt in range(2):
            for i in range(16): a(f"v_mul_f32 v{ACC2[2*nt+rt]+i}, v{ACC2[2*nt+rt]+i}, v{160+rt}")
    srd(a, 52, P_B2, 1024)
    srd(a, 56, P_OUT, 2048 * 512 * 2)
    a("s_lshl_b32 s9, s5, 7")
    a("s_lshl_b32 s10, s8, 6")
    a("s_add_u32 s61, s9, s10")
    a("v_lshlrev_b32 v6, 5, v4")
    a("buffer_load_dwordx4 v[12:15], v6, s[52:55], s61 offen")
    a("buffer_load_dwordx4 v[164:167], v6, s[52:55], s61 offen offset:16")
    a("v_lshrrev_b32 v6, 3, v1")
    a("v_lshlrev_b32 v6, 7, v6")
    a("v_and_b32 v7, 7, v1")
    a("v_lshl_add_u32 v6, v7, 2, v6")
    a("s_lshl_b32 s9, s4, 8")
    a("s_lshl_b32 s10, s12, 5")
    a("s_add_u32 s9, s9, s10")
    a(f"s_add_u32 s9, s9, {F3}")
    a("s_lshl_b32 s10, s4, 16")
    a("s_lshl_b32 s11, s12, 13")
    a("s_add_u32 s10, s10, s11")
    a(f"s_add_u32 s10, s10, {OF}")
    a("s_lshl_b32 s13, s12, 14")
    a("v_add_u32 v9, s13, v5")
    a("s_barrier")
    stamp(a, 6)
    a("s_mov_b64 exec, 0xffff")
    poll(a, f"{n}_p3", "buffer_load_dword v7, v6, s[48:51], s9 offen sc1", 7, 1, sleep=1)
    a("s_mov_b64 exec, -1")
    stamp(a, 7)
    vm = VmTracker()
    for half in range(2):
        for rt in range(2):
            a(f"s_add_u32 m0, s13, {rt*8192 + half*4096}")
            a(f"s_add_u32 s11, s10, {rt*32768 + half*4096}")
            for k in range(4):
                a(f"buffer_load_dwordx4 v5, s[48:51], s11 offen offset:{k*1024} sc1 lds"); vm.issue(half)
    OFR = [16, 24]
    for half in range(2):
        a(f"s_waitcnt vmcnt({vm.wait_for(half)})")
        for k in range(5):
            if k < 4:
                ks = half * 4 + k
                for rt in range(2):
                    a(f"ds_read_b128 {vr(OFR[k&1]+4*rt,4)}, v9 offset:{rt*8192 + ks*1024}")
            if k > 0:
                a(f"s_waitcnt lgkmcnt({2 if k < 4 else 0})")
                ks = half * 4 + k - 1
                for nt in range(2):
                    for rt in range(2):
                        a(f"{MF} {vr(ACC2[2*nt+rt],16)}, {vr(WOR+8*ks+4*nt,4)}, {vr(OFR[(k-1)&1]+4*rt,4)}, {vr(ACC2[2*nt+rt],16)}")
    stamp(a, 8)
    a("s_lshl_b32 s9, s12, 12")
    a("s_add_u32 s9, s9, 65536")
    a("v_add_u32 v7, s9, v5")
    for q in range(4):
        for k in range(4):
            a(f"ds_write_b128 v7, {vr(ACC2[q]+4*k,4)} offset:{q*16384 + k*1024}")
    a("s_lshl_b32 s9, s12, 14")
    a("s_add_u32 s9, s9, 65536")
    a("v_add_u32 v7, s9, v5")
    a("s_cmp_eq_u32 s7, 1")
    a("s_cselect_b64 vcc, -1, 0")
    a("v_cndmask_b32 v8, v160, v161, vcc")
    for i in range(8):
        src = 12 + i if i < 4 else 164 + i - 4
        a(f"v_lshlrev_b32 v{80+2*i}, 16, v{src}")
        a(f"v_and_b32 v{81+2*i}, 0xffff0000, v{src}")
    a("s_lshl_b32 s10, s4, 1")
    a("s_add_u32 s10, s10, s7")
    a("s_lshl_b32 s10, s10, 15")
    a("s_add_u32 s10, s10, s61")
    a("v_lshlrev_b32 v6, 10, v3")
    a("v_lshl_add_u32 v6, v4, 5, v6")
    a("s_waitcnt lgkmcnt(0)")
    a("s_barrier")
    R = [16, 32, 48, 64]
    for w in range(4):
        for k in range(4):
            a(f"ds_read_b128 {vr(R[w]+4*k,4)}, v7 offset:{w*4096 + k*1024}")
        if w == 2: a("s_waitcnt lgkmcnt(4)")
    for i in range(16): a(f"v_fma_f32 v{R[0]+i}, v{80+i}, v8, v{R[0]+i}")
    for i in range(16): a(f"v_add_f32 v{R[0]+i}, v{R[0]+i}, v{R[1]+i}")
    a("s_waitcnt lgkmcnt(0)")
    for i in range(16): a(f"v_add_f32 v{R[2]+i}, v{R[2]+i}, v{R[3]+i}")
    for i in range(16): a(f"v_add_f32 v{R[0]+i}, v{R[0]+i}, v{R[2]+i}")
    for i in range(8): a(f"v_cvt_pk_bf16_f32 v{R[1]+i}, v{R[0]+2*i}, v{R[0]+2*i+1}")
    a(f"buffer_store_dwordx4 {vr(R[1],4)}, v6, s[56:59], s10 offen")
    a(f"buffer_store_dwordx4 {vr(R[1]+4,4)}, v6, s[56:59], s10 offen offset:16")
    stamp(a, 9)
    stamp_flush(a)
    a.label(f"{n}_end")
    a("s_endpgm")
    return a

def main(out):
    a = gen()
    for p in a.check_all_edges(): print("HAZARD on edge", p, file=sys.stderr)
    print("instrs", len(a.ins), "auto nops", a.nops_added, file=sys.stderr)
    k = NAME + "_kernel"
    txt = f"; @launch grid=(256,1,1) block=(768,1,1) lds={LDS_TOTAL}\n"
    txt += '.amdgcn_target "amdgcn-amd-amdhsa--gfx950"\n.text\n' + kernel_header(k) + a.text()
    txt += '.section .rodata,"a"\n.p2align 6\n' + kernel_desc(k, 168, sgpr=100)
    open(out, "w").write(txt)

if __name__ == "__main__":
    main(sys.argv[1])
```

```python
import sys, math, struct
from asmlib import *

NAME = "gated_mix__softmax_full_mha__dense_activation_gelu__prompt"
def f32hex(x): return "0x%08x" % struct.unpack('<I', struct.pack('<f', x))[0]
def vr(a, n=1): return f"v{a}" if n == 1 else f"v[{a}:{a+n-1}]"
MF = "v_mfma_f32_32x32x16_bf16"
LOG2E = 1.4426950408889634
GELU_C0 = -2.0 * math.sqrt(2.0 / math.pi) * LOG2E
GELU_C1 = GELU_C0 * 0.044715

QF = 0x000000; KF = 0x200000; VF = 0x400000; OF = 0x800000
F2 = 0xEA0000; F3 = 0xEA2000; GO = 0xEA8000; G8 = 0xEB0000; HF = 0x1000000
STAMP = 0x1800000
WS_SIZE = 0x2000000
NS = 6; SLOT = 14336; WBASE = 65536; GWB = WBASE + NS * SLOT; GRED = GWB + 1024
RING = 131072; RSL = 3; CNT = 163840 - 64
LDS_TOTAL = 163840
P_X, P_WQKV, P_WO, P_BX, P_W1, P_B1, P_W2, P_B2, P_GW, P_OUT, P_DBG, P_WS = [16 + 2 * i for i in range(12)]

OPT = set(x for x in sys.argv[1:] if x.startswith('--'))
DO_STAMP = '--stamp' in OPT
NST = 10
def stamp(a, k):
    if not DO_STAMP: return
    a(f"s_memtime s[{72+2*k}:{73+2*k}]")
    if k == 0: a("s_memrealtime s[94:95]")
_sf = [0]
def stamp_flush(a):
    if not DO_STAMP: return
    a("s_memrealtime s[96:97]")
    a(f"s_memtime s[{72+2*NST}:{73+2*NST}]")
    a("s_waitcnt lgkmcnt(0)")
    if '--dbgstamp' in OPT:
        _sf[0] += 1
        if _sf[0] == 2:
            a("s_cmp_lg_u32 s2, 77")
            a("s_cbranch_scc1 L_end")
            a("s_cmp_lg_u32 s3, 4")
            a("s_cbranch_scc1 L_end")
            srd(a, 68, P_DBG, 256)
            a("v_mov_b32 v1, 0")
            for k in range(1, NST + 1):
                a(f"s_sub_u32 s98, s{72+2*k}, s72")
                a("v_mov_b32 v2, s98")
                a(f"buffer_store_dword v2, v1, s[68:71], 0 offen offset:{12+4*k}")
            a("s_sub_u32 s98, s96, s94")
            a("v_mov_b32 v2, s98")
            a("buffer_store_dword v2, v1, s[68:71], 0 offen offset:60")
        return
    a("v_lshrrev_b32 v1, 6, v0")
    a("v_lshlrev_b32 v1, 6, v1")
    a("s_lshl_b32 s98, s2, 10")
    a(f"s_add_u32 s98, s98, {STAMP}")
    for k in range(NST + 1):
        a(f"v_mov_b32 v2, s{72+2*k}")
        a(f"buffer_store_dword v2, v1, s[48:51], s98 offen offset:{4*k}")
    a("v_mov_b32 v2, s94")
    a("buffer_store_dword v2, v1, s[48:51], s98 offen offset:56")
    a("v_mov_b32 v2, s96")
    a("buffer_store_dword v2, v1, s[48:51], s98 offen offset:60")

def srd(a, d, p, nbytes):
    a(f"s_mov_b32 s{d}, s{p}")
    a(f"s_and_b32 s{d+1}, s{p+1}, 0xffff")
    a(f"s_mov_b32 s{d+2}, {nbytes}")
    a(f"s_mov_b32 s{d+3}, 0x00020000")

def interleave(a, mf, rd, per_gap):
    rd = list(rd)
    for m in mf:
        a(m)
        for _ in range(per_gap):
            if rd: a(rd.pop(0))
    for r in rd: a(r)
class Cap:
    def __init__(self): self.l = []
    def __call__(self, t): self.l.append(t)

def gelu_pack(a, acc, tmp, dst):
    for i in range(16): a(f"v_mul_f32 v{tmp+i}, v{acc+i}, v{acc+i}")
    for i in range(16): a(f"v_fma_f32 v{tmp+i}, v{tmp+i}, s60, v{tmp+16}")
    for i in range(16): a(f"v_mul_f32 v{tmp+i}, v{tmp+i}, v{acc+i}")
    for i in range(16): a(f"v_exp_f32 v{tmp+i}, v{tmp+i}")
    for i in range(16): a(f"v_add_f32 v{tmp+i}, 1.0, v{tmp+i}")
    for i in range(16): a(f"v_rcp_f32 v{tmp+i}, v{tmp+i}")
    for i in range(16): a(f"v_mul_f32 v{tmp+i}, v{tmp+i}, v{acc+i}")
    for i in range(8): a(f"v_cvt_pk_bf16_f32 v{dst+i}, v{tmp+2*i}, v{tmp+2*i+1}")

SPIN_MAX = 1 << 17
ARR = 23
def poll(a, lab, load, vdst, expect, sleep=2):
    a("s_mov_b32 s64, 0")
    a.label(lab)
    a(load)
    a("s_waitcnt vmcnt(0)")
    a(f"v_cmp_ne_u32 vcc, {expect}, v{vdst}")
    a("s_cmp_eq_u64 vcc, 0")
    a(f"s_cbranch_scc1 {lab}_ok")
    a(f"s_sleep {sleep}")
    a("s_add_u32 s64, s64, 1")
    a(f"s_cmp_lt_u32 s64, {SPIN_MAX}")
    a(f"s_cbranch_scc1 {lab}")
    a.label(lab + "_ok")

def gen():
    a = Asm()
    n = "L"
    a("s_cmp_ge_u32 s2, 256")
    a(f"s_cbranch_scc1 {n}_end")
    stamp(a, 0)
    a("s_load_dwordx16 s[16:31], s[0:1], 0")
    a("s_load_dwordx8 s[32:39], s[0:1], 64")
    a("v_and_b32 v1, 63, v0")
    a("v_lshrrev_b32 v2, 6, v0")
    a("v_readfirstlane_b32 s3, v2")
    a("s_and_b32 s7, s2, 7")
    a("s_lshr_b32 s8, s2, 3")
    a("s_lshr_b32 s4, s7, 1")
    a("s_lshl_b32 s4, s4, 3")
    a("s_and_b32 s9, s8, 7")
    a("s_add_u32 s4, s4, s9")
    a("s_and_b32 s5, s7, 1")
    a("s_lshl_b32 s5, s5, 2")
    a("s_lshr_b32 s10, s8, 3")
    a("s_add_u32 s5, s5, s10")
    a("s_lshl_b32 s66, s5, 2")
    a("s_and_b32 s67, s4, 3")
    a("s_add_u32 s66, s66, s67")
    a("s_lshr_b32 s67, s4, 2")
    a("s_lshl_b32 s10, s10, 1")
    a("s_add_u32 s6, s9, s10")
    a("s_and_b32 s6, s6, 7")
    a("v_and_b32 v3, 31, v1")
    a("v_lshrrev_b32 v4, 5, v1")
    a("s_cmp_lt_u32 s3, 4")
    a(f"s_cbranch_scc1 {n}_A")
    a("s_cmp_lt_u32 s3, 8")
    a(f"s_cbranch_scc1 {n}_B")
    a("s_sub_u32 s7, s3, 8")
    a("v_lshrrev_b32 v5, 3, v1")
    a("v_lshlrev_b32 v5, 10, v5")
    a("v_and_b32 v6, 7, v1")
    a("v_lshrrev_b32 v7, 4, v1")
    a("v_xor_b32 v7, v6, v7")
    a("v_lshl_add_u32 v8, v7, 4, v5")
    a("v_xor_b32 v7, 4, v7")
    a("v_lshl_add_u32 v9, v7, 4, v5")
    a("v_add_u32 v9, 7168, v9")
    a("v_lshrrev_b32 v5, 3, v1")
    a("v_mul_u32_u24 v10, 3072, v5")
    a("v_bfe_u32 v7, v1, 4, 1")
    a("v_lshlrev_b32 v7, 2, v7")
    a("v_xor_b32 v7, v6, v7")
    a("v_lshl_add_u32 v10, v7, 4, v10")
    a("s_lshl_b32 s9, s6, 3")
    a("v_add_u32 v5, s9, v1")
    a("v_and_b32 v5, 63, v5")
    a("v_lshlrev_b32 v11, 4, v5")
    a("s_lshl_b32 s10, s4, 16")
    a("s_lshl_b32 s9, s7, 14")
    a("s_add_u32 s10, s10, s9")
    a("s_mul_i32 s11, s7, 24576")
    a("s_lshl_b32 s9, s5, 7")
    a("s_add_u32 s11, s11, s9")
    a("s_mul_i32 s12, s5, 448")
    a("s_lshl_b32 s13, s7, 11")
    a("s_mul_i32 s14, s7, 3072")
    a("s_mul_i32 s8, s7, 3")
    a("s_min_u32 s9, s7, 2")
    a("s_add_u32 s8, s8, s9")
    a("s_lshl_b32 s15, s8, 10")
    a("s_waitcnt lgkmcnt(0)")
    srd(a, 40, P_X, 2048 * 512 * 2)
    srd(a, 44, P_WQKV, 512 * 1536 * 2)
    def late_setup():
        srd(a, 48, P_WS, WS_SIZE)
        srd(a, 52, P_W1, 512 * 1792 * 2)
        srd(a, 68, P_DBG, 256)
        for k in range(4):
            a(f"s_add_u32 s9, s8, {k}")
            a("s_lshl_b32 s9, s9, 6")
            a("v_add_u32 v5, s9, v1")
            a("v_mul_u32_u24 v6, 2341, v5")
            a("v_lshrrev_b32 v6, 16, v6")
            a("v_mul_u32_u24 v7, 28, v6")
            a("v_sub_u32 v7, v5, v7")
            a("v_mul_u32_u24 v6, 3584, v6")
            a(f"v_lshl_add_u32 v{12+k}, v7, 4, v6")
            if k: a(f"v_subrev_u32 v{12+k}, {k*1024}, v{12+k}")
    a("s_cmp_ge_u32 s7, 2")
    a(f"s_cbranch_scc1 {n}_C1")
    for var in range(2):
        if var == 1: a.label(f"{n}_C1")
        np1 = 4 - var
        vm = VmTracker()
        def issueX(q):
            a(f"s_add_u32 s60, s6, {q}")
            a("s_and_b32 s60, s60, 7")
            a("s_lshl_b32 s60, s60, 7")
            a("s_add_u32 s60, s60, s10")
            a(f"s_add_u32 m0, s13, {q*8192}")
            for jj in range(2):
                a(f"buffer_load_dwordx4 v{8+jj}, s[40:43], s60 offen offset:{jj*1024} lds"); vm.issue(('x', q))
        def issueW(p):
            slot = WBASE + (p % NS) * SLOT
            pp = p & 15
            a("s_lshl_b32 s61, s6, 1")
            a(f"s_add_u32 s61, s61, {pp}")
            a("s_and_b32 s61, s61, 15")
            if p < 16:
                a("s_mul_i32 s61, s61, 98304")
                a(f"s_add_u32 m0, s14, {slot}")
                a("s_add_u32 s61, s61, s11")
                for sg in range(3):
                    a(f"buffer_load_dwordx4 v10, s[44:47], s61 offen offset:{sg*1024} lds"); vm.issue(('w', p))
            else:
                a("s_mul_i32 s61, s61, 114688")
                a(f"s_add_u32 m0, s15, {slot}")
                a("s_add_u32 s61, s61, s12")
                for k in range(np1):
                    a(f"buffer_load_dwordx4 v{12+k}, s[52:55], s61 offen offset:{k*1024} lds"); vm.issue(('w', p))
        stamp(a, 1)
        issueX(0)
        if var == 1:
            srd(a, 56, P_GW, 1024)
            a(f"s_mov_b32 m0, {GWB}")
            a("buffer_load_dwordx4 v11, s[56:59], 0 offen lds"); vm.issue('g')
        issueW(0); issueW(1); issueX(1); issueW(2)
        late_setup()
        nx = 2; nw = 3
        for p in range(32):
            a(f"s_waitcnt vmcnt({vm.wait_for(('w', p))})")
            if p == 0: stamp(a, 2)
            a("s_barrier")
            cnt = 0
            while nw < 32 and nw <= p + NS - 1 and cnt < 2:
                if nx < 8 and 2 * nx <= nw: issueX(nx); nx += 1
                issueW(nw); nw += 1; cnt += 1
        if var == 0:
            a("s_cmp_lg_u32 s7, 0")
            a(f"s_cbranch_scc1 {n}_Cdone")
            a("s_lshl_b32 s9, s5, 5")
            a("s_add_u32 s9, s9, s4")
            a("s_lshl_b32 s9, s9, 7")
            a(f"s_add_u32 s9, s9, {GO}")
            a("v_mov_b32 v5, 0")
            a("s_mov_b64 exec, 1")
            stamp(a, 3)
            poll(a, f"{n}_pg", "buffer_load_dword v6, v5, s[48:51], s9 offen sc1", 6, 1, sleep=1)
            a("s_mov_b64 exec, -1")
            a(f"s_branch {n}_Cdone")
    a.label(f"{n}_Cdone")
    a("s_sub_u32 s7, s3, 4")
    a("s_mov_b32 s28, 1")
    a(f"s_branch {n}_attn")

    def xaddr(rt_sreg, base):
        a("v_bfe_u32 v5, v3, 1, 3")
        a("v_lshlrev_b32 v6, 7, v3")
        if rt_sreg is not None:
            a(f"s_lshl_b32 s9, {rt_sreg}, 12")
            a("v_add_u32 v6, s9, v6")
        for s in range(4):
            a(f"v_add_u32 v7, {2*s}, v4")
            a("v_xor_b32 v7, v7, v5")
            a(f"v_lshl_add_u32 v{base+s}, v7, 4, v6")
    a.label(f"{n}_A")
    a("s_and_b32 s7, s3, 1")
    a("s_lshr_b32 s8, s3, 1")
    XA = 8
    xaddr("s7", XA)
    a("v_bfe_u32 v5, v1, 2, 2")
    a("v_mul_u32_u24 v6, 3072, v4")
    a("v_lshl_add_u32 v6, v5, 7, v6")
    a("v_lshrrev_b32 v5, 1, v5")
    a("v_xor_b32 v5, s8, v5")
    a("v_lshl_add_u32 v6, v5, 6, v6")
    a("v_bfe_u32 v5, v1, 4, 1")
    a("v_lshl_add_u32 v6, v5, 5, v6")
    a("v_and_b32 v5, 3, v1")
    a("v_lshl_add_u32 v6, v5, 3, v6")
    a(f"v_add_u32 v12, {WBASE}, v6")
    a(f"v_add_u32 v13, {WBASE + 4*SLOT}, v6")
    a("s_waitcnt lgkmcnt(0)")
    srd(a, 48, P_WS, WS_SIZE)
    srd(a, 68, P_DBG, 256)
    a("s_cmp_lg_u32 s3, 0")
    a(f"s_cbranch_scc1 {n}_Az")
    a("s_lshl_b32 s9, s4, 7")
    a("s_lshl_b32 s10, s5, 4")
    a("s_add_u32 s9, s9, s10")
    a(f"s_add_u32 s9, s9, {F2}")
    a("v_lshl_add_u32 v5, v1, 2, s9")
    a("s_lshl_b32 s9, s67, 10")
    a("s_lshl_b32 s10, s66, 2")
    a("s_add_u32 s9, s9, s10")
    a(f"s_add_u32 s9, s9, {F3 - 4*128}")
    a("v_lshl_add_u32 v6, v1, 7, s9")
    a("v_cmp_gt_u32 vcc, 4, v1")
    a("v_cndmask_b32 v5, v6, v5, vcc")
    a("s_lshl_b32 s9, s5, 5")
    a("s_add_u32 s9, s9, s4")
    a("s_lshl_b32 s9, s9, 7")
    a(f"s_add_u32 s9, s9, {GO}")
    a("s_sub_u32 s9, s9, 48")
    a("v_lshl_add_u32 v6, v1, 2, s9")
    a("v_cmp_le_u32 vcc, 12, v1")
    a("v_cndmask_b32 v5, v5, v6, vcc")
    a("v_mov_b32 v6, 0")
    a(f"v_mov_b32 v7, {CNT}")
    a("v_lshl_add_u32 v7, v1, 2, v7")
    a("s_mov_b64 exec, 0x3fff")
    a("buffer_store_dword v6, v5, s[48:51], 0 offen sc1")
    a("ds_write_b32 v7, v6")
    a("s_mov_b64 exec, -1")
    a.label(f"{n}_Az")
    FR = [16, 48]; ACC = [80, 96, 112]
    def readsA(p, a):
        f = FR[p & 1]; sl = p % NS
        wb = 12 if sl < 4 else 13; wo = (sl % 4) * SLOT
        for s in range(2):
            a(f"ds_read_b128 {vr(f+16*s,4)}, v{XA + 2*(p&1) + s} offset:{(p>>1)*8192}")
            for g in range(3):
                for t in range(2):
                    a(f"ds_read_b64_tr_b16 {vr(f+16*s+4+4*g+2*t,2)}, v{wb} offset:{wo + s*6144 + g*1024 + t*512}")
    def mfA(p, a):
        f = FR[p & 1]
        for s in range(2):
            c = (lambda x: "0") if (p == 0 and s == 0) else (lambda x: vr(x, 16))
            x = f + 16 * s
            a(f"{MF} {vr(ACC[1],16)}, {vr(x+8,4)}, {vr(x,4)}, {c(ACC[1])}")
            a(f"{MF} {vr(ACC[2],16)}, {vr(x,4)}, {vr(x+12,4)}, {c(ACC[2])}")
            a(f"{MF} {vr(ACC[0],16)}, {vr(x+4,4)}, {vr(x,4)}, {c(ACC[0])}")
    for p in range(16):
        a("s_barrier")
        if p == 0: stamp(a, 1)
        r = Cap(); m = Cap()
        readsA(p, r)
        if p: mfA(p - 1, m)
        interleave(a, m.l, r.l, 3)
        a("s_waitcnt lgkmcnt(0)")
    a("s_barrier")
    stamp(a, 2)
    mfA(15, a)
    a("s_lshl_b32 s9, s4, 1")
    a("s_add_u32 s9, s9, s7")
    a("s_lshl_b32 s10, s5, 1")
    a("s_add_u32 s10, s10, s8")
    a("s_lshl_b32 s10, s10, 17")
    a("s_lshl_b32 s9, s9, 10")
    a("s_add_u32 s10, s10, s9")
    a("v_lshlrev_b32 v5, 4, v1")
    a("v_bfe_u32 v6, v1, 4, 1")
    a("v_lshlrev_b32 v6, 16, v6")
    a("v_lshl_add_u32 v6, v4, 8, v6")
    a("v_and_b32 v7, 15, v1")
    a("v_lshl_add_u32 v6, v7, 4, v6")
    a("s_barrier")
    for i in range(8): a(f"v_cvt_pk_bf16_f32 v{24+i}, v{ACC[1]+2*i}, v{ACC[1]+2*i+1}")
    a(f"s_add_u32 s11, s10, {KF}")
    a("buffer_store_dwordx4 v[24:27], v5, s[48:51], s11 offen sc1")
    a(f"s_add_u32 s11, s10, {KF+65536}")
    a("buffer_store_dwordx4 v[28:31], v5, s[48:51], s11 offen sc1")
    a("s_barrier")
    for i in range(8): a(f"v_cvt_pk_bf16_f32 v{32+i}, v{ACC[2]+2*i}, v{ACC[2]+2*i+1}")
    a(f"s_add_u32 s11, s10, {VF}")
    a("buffer_store_dwordx4 v[32:35], v6, s[48:51], s11 offen sc1")
    a("buffer_store_dwordx4 v[36:39], v6, s[48:51], s11 offen offset:512 sc1")
    a("s_barrier")
    sc = f32hex(0.25 * LOG2E)
    for i in range(16): a(f"v_mul_f32 v{ACC[0]+i}, {sc}, v{ACC[0]+i}")
    for i in range(8): a(f"v_cvt_pk_bf16_f32 v{16+i}, v{ACC[0]+2*i}, v{ACC[0]+2*i+1}")
    a(f"s_add_u32 s11, s10, {QF}")
    a("buffer_store_dwordx4 v[16:19], v5, s[48:51], s11 offen sc1")
    a(f"s_add_u32 s11, s10, {QF+65536}")
    a("buffer_store_dwordx4 v[20:23], v5, s[48:51], s11 offen sc1")
    for p in range(20, ARR + 1):
        if p == ARR: a("s_waitcnt vmcnt(0)")
        a("s_barrier")
    stamp(a, 3)
    a(f"s_mov_b32 s13, {ARR + 1}")
    a("s_mov_b32 s14, 1")
    a("s_cmp_lg_u32 s3, 0")
    a(f"s_cbranch_scc1 {n}_Abl")
    a("s_mov_b32 s14, 0")
    a("s_and_b32 s15, s5, 3")
    a("s_mul_i32 s15, s15, 6")
    a("s_lshl_b32 s11, 1, s15")
    a("s_lshr_b32 s12, s5, 2")
    a("s_lshl_b32 s12, s12, 7")
    a("v_mov_b32 v5, 0")
    a("v_mov_b32 v6, s11")
    a("v_mov_b32 v7, 1")
    a("s_mov_b64 exec, 1")
    a("buffer_atomic_add_x2 v[6:7], v5, s[68:71], s12 offen sc0 sc1")
    a("s_mov_b64 exec, -1")
    a.label(f"{n}_Abl")
    a("s_cmp_ge_u32 s13, 32")
    a(f"s_cbranch_scc1 {n}_Alast")
    a("s_barrier")
    a("s_add_u32 s13, s13, 1")
    a("s_cmp_lg_u32 s14, 0")
    a(f"s_cbranch_scc1 {n}_Abl")
    a("v_readfirstlane_b32 s9, v6")
    a("s_cmp_eq_u32 s9, s11")
    a(f"s_cbranch_scc1 {n}_Abl")
    a.label(f"{n}_Ahandle")
    a("s_waitcnt vmcnt(0)")
    a("s_mov_b32 s14, 1")
    a("v_readfirstlane_b32 s9, v6")
    a("v_readfirstlane_b32 s10, v7")
    a("s_lshr_b32 s9, s9, s15")
    a("s_and_b32 s9, s9, 63")
    a("s_cmp_lg_u32 s9, 31")
    a(f"s_cbranch_scc1 {n}_Abl")
    a("s_lshl_b32 s9, s5, 12")
    a(f"s_add_u32 s9, s9, {GO}")
    a("v_lshlrev_b32 v5, 7, v1")
    a("v_mov_b32 v6, 1")
    a("s_mov_b32 exec_hi, 0")
    a("buffer_store_dword v6, v5, s[48:51], s9 offen sc1")
    a("s_mov_b64 exec, -1")
    a("s_cmp_lg_u32 s10, 127")
    a(f"s_cbranch_scc1 {n}_Abl")
    a("s_mov_b32 s14, 2")
    a(f"s_branch {n}_Abl")
    a.label(f"{n}_Alast")
    a("s_cmp_eq_u32 s14, 0")
    a(f"s_cbranch_scc1 {n}_Ahandle")
    a("s_mov_b32 s28, s14")
    a("s_mov_b32 s7, s3")
    a.label(f"{n}_attn")
    Q = 4; Kf = [8, 12]; Vf = [16, 24]; Cn = 32; S = [48, 64]; P = 80; O = 88
    VL16 = 104; VKA = 105; VVA = 106; VG = 107; VM = 108; VT = 109; VK = 110; VV = 111; VC = 112; VONE = 113; VT2 = 114
    a(f"v_lshlrev_b32 v{VL16}, 4, v1")
    a(f"v_mov_b32 v{VKA}, v{VL16}")
    a(f"v_and_b32 v{VT}, 15, v1")
    a(f"v_lshlrev_b32 v{VT}, 4, v{VT}")
    a(f"v_lshrrev_b32 v{VT2}, 5, v1")
    a(f"v_lshl_add_u32 v{VT}, v{VT2}, 8, v{VT}")
    a(f"v_add_u32 v{VVA}, 65536, v{VT}")
    a(f"v_and_b32 v{VT}, 27, v1")
    a(f"v_cmp_eq_u32 vcc, 16, v{VT}")
    a(f"v_mov_b32 v{VT}, 0x3f803f80")
    a(f"v_cndmask_b32 v{VT}, 0, v{VT}, vcc")
    for b in range(2):
        for i in range(8): a(f"v_mov_b32 v{Vf[b]+i}, v{VT}")
    a(f"v_mov_b32 v{VC}, {CNT}")
    a(f"v_mov_b32 v{VONE}, 1")
    a(f"v_and_b32 v{VT}, 31, v1")
    a(f"v_lshlrev_b32 v{VT}, 2, v{VT}")
    a("s_mov_b32 s20, 0x0000ffff")
    a("s_mov_b32 s21, 0x0000ffff")
    a("s_mov_b32 s22, 0")
    a("s_and_b32 s9, s7, 1")
    a("s_lshr_b32 s10, s7, 1")
    a("s_lshl_b32 s10, s10, 10")
    a("s_lshl_b32 s11, s9, 16")
    a("s_add_u32 s11, s11, s10")
    a("s_lshl_b32 s12, s9, 21")
    a("s_add_u32 s12, s12, s10")
    a("s_lshl_b32 s13, s66, 16")
    a("s_add_u32 s12, s12, s13")
    a(f"s_add_u32 s12, s12, {KF}")
    a("s_lshl_b32 s14, s67, 3")
    a("s_add_u32 s14, s14, s7")
    a("s_lshl_b32 s15, s14, 10")
    a("s_add_u32 s15, s15, s13")
    a("s_lshr_b32 s23, s66, 2")
    a("s_lshl_b32 s23, s23, 13")
    a("s_lshl_b32 s24, s14, 7")
    a("s_add_u32 s23, s23, s24")
    a(f"s_add_u32 s23, s23, {G8}")
    a("s_barrier")
    stamp(a, 4)
    def dma_next():
        a("s_mov_b32 m0, s11")
        a("s_add_u32 s11, s11, 4096")
        a(f"buffer_load_dwordx4 v{VL16}, s[48:51], s12 offen sc1 lds")
        a("s_add_u32 s12, s12, 4096")
    dma_next()
    a(f"buffer_load_dwordx4 {vr(Q,4)}, v{VL16}, s[48:51], s15 offen sc1")
    dma_next(); dma_next(); dma_next()
    a(f"buffer_load_dword v{VG}, v{VT}, s[48:51], s23 offen sc1")
    def lsignal(vmn):
        a(f"s_waitcnt vmcnt({vmn})")
        a("s_mov_b64 exec, 1")
        a(f"ds_add_u32 v{VC}, v{VONE}")
        a("s_mov_b64 exec, -1")
    def lwait(lab, off, target):
        a("s_mov_b32 s64, 0")
        a.label(lab)
        a(f"ds_read_b32 v{VT2}, v{VC} offset:{off}")
        a("s_add_u32 s64, s64, 1")
        a("s_waitcnt lgkmcnt(0)")
        a(f"v_readfirstlane_b32 s25, v{VT2}")
        a("s_lshr_b32 s65, s64, 16")
        a("s_add_u32 s25, s25, s65")
        a(f"s_cmp_lt_u32 s25, {target}")
        a(f"s_cbranch_scc1 {lab}")
    a("s_cmp_lg_u32 s28, 2")
    a(f"s_cbranch_scc1 {n}_no2")
    a(f"v_mov_b32 v{VT2}, 1")
    a(f"v_mov_b32 v{VK}, 64")
    a("s_mov_b64 exec, 1")
    a(f"buffer_atomic_add v{VT2}, v{VK}, s[68:71], 0 offen sc0 sc1")
    a("s_mov_b64 exec, -1")
    a("s_waitcnt vmcnt(0)")
    a(f"v_readfirstlane_b32 s9, v{VT2}")
    a("s_cmp_lg_u32 s9, 1")
    a(f"s_cbranch_scc1 {n}_no2")
    a(f"v_lshlrev_b32 v{VK}, 7, v1")
    for k in range(4):
        a(f"s_mov_b32 s9, {GO + k*8192}")
        a(f"buffer_store_dword v{VONE}, v{VK}, s[48:51], s9 offen offset:4 sc1")
    a("s_waitcnt vmcnt(0)")
    a.label(f"{n}_no2")
    lsignal(3)
    lwait(f"{n}_s0", 0, 8)
    a(f"v_add_u32 v{VC}, 4, v{VC}")
    stamp(a, 5)
    a(f"ds_read_b128 {vr(Kf[0],4)}, v{VKA}")
    a("s_waitcnt lgkmcnt(0)")
    s = S[0]
    a(f"{MF} {vr(s,16)}, {vr(Kf[0],4)}, {vr(Q,4)}, 0")
    a(f"v_max3_f32 v{VM}, v{s}, v{s+1}, v{s+2}")
    for i in range(3, 15, 2): a(f"v_max3_f32 v{VM}, v{VM}, v{s+i}, v{s+i+1}")
    a(f"v_max_f32 v{VM}, v{VM}, v{s+15}")
    lsignal(1)
    a.label(f"{n}_setup")
    a(f"ds_read_b128 {vr(Kf[0],4)}, v{VKA}")
    a(f"ds_read_b128 {vr(Kf[1],4)}, v{VKA} offset:1024")
    a("s_mov_b64 exec, s[20:21]")
    a(f"ds_read_b128 {vr(Vf[0],4)}, v{VVA}")
    a(f"ds_read_b128 {vr(Vf[0]+4,4)}, v{VVA} offset:512")
    a("s_mov_b64 exec, -1")
    a(f"v_mov_b32 v{VT}, v{VM}")
    a(f"v_permlane32_swap_b32 v{VT}, v{VM}")
    a(f"v_max_f32 v{VM}, v{VM}, v{VT}")
    for i in range(16): a(f"v_sub_f32 v{Cn+i}, 0, v{VM}")
    for i in range(16): a(f"v_mov_b32 v{O+i}, 0")
    for i in range(4): a(f"v_mov_b32 v{P+4+i}, 0")
    a(f"v_mov_b32 v{VK}, v{VKA}")
    a(f"v_mov_b32 v{VV}, v{VVA}")
    a("s_waitcnt lgkmcnt(0)")
    a(f"{MF} {vr(S[0],16)}, {vr(Kf[0],4)}, {vr(Q,4)}, {vr(Cn,16)}")
    a("s_mov_b32 s26, 0")
    a("s_mov_b32 s27, s22")
    a("s_nop 7")
    a("s_nop 1")
    U = 4
    a.label(f"{n}_loop")
    a("s_cmp_eq_u32 s27, 0")
    a(f"s_cbranch_scc1 {n}_side")
    a.label(f"{n}_body")
    for u in range(U):
        if u in (0, U - 1):
            a("s_cmp_lt_u32 s7, 4")
            a(f"s_cbranch_scc1 {n}_pt{u}")
            a(f"s_setprio {1 if u == 0 else 0}")
            a.label(f"{n}_pt{u}")
        kb = u & 1
        s = S[u & 1]; sn = S[(u + 1) & 1]; p = P
        ex = [f"v_exp_f32 v{s+i}, v{s+i}" for i in range(16)]
        cv = [f"v_cvt_pk_bf16_f32 v{p+i}, v{s+2*i}, v{s+2*i+1}" for i in range(8)]
        pv2p = f"{MF} {vr(O,16)}, {vr(Vf[kb^1]+4,4)}, {vr(p+4,4)}, {vr(O,16)}"
        pv1 = f"{MF} {vr(O,16)}, {vr(Vf[kb],4)}, {vr(p,4)}, {vr(O,16)}"
        smf = f"{MF} {vr(sn,16)}, {vr(Kf[kb^1],4)}, {vr(Q,4)}, {vr(Cn,16)}"
        ldv = ["s_mov_b64 exec, s[20:21]",
               f"ds_read_b128 {vr(Vf[kb^1],4)}, v{VV} offset:{(u+1)*1024}",
               f"ds_read_b128 {vr(Vf[kb^1]+4,4)}, v{VV} offset:{(u+1)*1024+512}",
               "s_mov_b64 exec, -1"]
        ldk = [f"ds_read_b128 {vr(Kf[kb],4)}, v{VK} offset:{(u+2)*1024}"]
        seq = ex[0:2] + [pv2p] + ldv + ex[2:4] + [cv[0]] + ex[4:6] + [cv[1], "s_waitcnt lgkmcnt(2)"] + ex[6:8] + [smf] + ldk
        seq += [cv[2]] + ex[8:10] + [cv[3]] + ex[10:13] + [cv[4], pv1] + ex[13:14] + [cv[5]] + ex[14:16] + [cv[6], cv[7]]
        for x in seq: a(x)
    a(f"v_add_u32 v{VK}, {U*1024}, v{VK}")
    a(f"v_add_u32 v{VV}, {U*1024}, v{VV}")
    a("s_add_u32 s26, s26, 1")
    a(f"s_cmp_lt_u32 s26, {64//U}")
    a(f"s_cbranch_scc1 {n}_loop")
    a(f"{MF} {vr(O,16)}, {vr(Vf[1]+4,4)}, {vr(P+4,4)}, {vr(O,16)}")
    stamp(a, 6)
    a("s_waitcnt lgkmcnt(0)")
    a("s_cmp_eq_u32 s22, 1")
    a(f"s_cbranch_scc1 {n}_fin")
    a(f"v_add_f32 v{VT}, |v{O}|, |v{O+1}|")
    for i in range(2, 8): a(f"v_add_f32 v{VT}, v{VT}, |v{O+i}|")
    a(f"v_mul_f32 v{VT}, 0, v{VT}")
    a(f"v_add_f32 v{VT}, v{VT}, v{O+8}")
    a(f"v_mov_b32 v{VT2}, 0x5d800000")
    a(f"v_cmp_nle_f32 vcc, v{VT}, v{VT2}")
    a("s_cmp_eq_u64 vcc, 0")
    a(f"s_cbranch_scc1 {n}_fin")
    a("s_mov_b32 s22, 1")
    a(f"v_mov_b32 v{VK}, v{VKA}")
    a(f"v_mov_b32 v{VM}, 0xff800000")
    a("s_mov_b64 exec, s[20:21]")
    for i in range(4): a(f"v_mov_b32 v{Vf[1]+4+i}, 0")
    a("s_mov_b64 exec, -1")
    a("s_mov_b32 s26, 0")
    a.label(f"{n}_mx")
    a(f"ds_read_b128 {vr(Kf[0],4)}, v{VK}")
    a("s_waitcnt lgkmcnt(0)")
    s = S[0]
    a(f"{MF} {vr(s,16)}, {vr(Kf[0],4)}, {vr(Q,4)}, 0")
    for i in range(0, 16, 2): a(f"v_max3_f32 v{VM}, v{VM}, v{s+i}, v{s+i+1}")
    a(f"v_add_u32 v{VK}, 1024, v{VK}")
    a("s_add_u32 s26, s26, 1")
    a("s_cmp_lt_u32 s26, 64")
    a(f"s_cbranch_scc1 {n}_mx")
    a(f"s_branch {n}_setup")
    a.label(f"{n}_side")
    a("s_cmp_eq_u32 s26, 1")
    a(f"s_cbranch_scc1 {n}_sd1")
    a("s_cmp_eq_u32 s26, 3")
    a(f"s_cbranch_scc1 {n}_sd3")
    a("s_cmp_eq_u32 s26, 7")
    a(f"s_cbranch_scc1 {n}_sd7")
    a(f"s_branch {n}_body")
    a.label(f"{n}_sd1")
    lwait(f"{n}_s1", 0, 8)
    stamp(a, 7)
    a(f"s_branch {n}_body")
    a.label(f"{n}_sd3")
    if '--stampA' in OPT: stamp(a, 1)
    lwait(f"{n}_s2", 4, 4)
    stamp(a, 8)
    a(f"s_branch {n}_body")
    a.label(f"{n}_sd7")
    if '--stampA' in OPT: stamp(a, 2)
    lwait(f"{n}_s3", 8, 4)
    stamp(a, 9)
    a("s_mov_b32 s27, 1")
    a(f"s_branch {n}_body")
    a.label(f"{n}_fin")
    a("s_nop 11")
    a(f"v_rcp_f32 v{VT}, v{O+8}")
    a("s_waitcnt vmcnt(0)")
    a(f"v_mul_f32 v{VT}, v{VT}, v{VG}")
    for i in range(8): a(f"v_mul_f32 v{O+i}, v{O+i}, v{VT}")
    for i in range(4): a(f"v_cvt_pk_bf16_f32 v{P+i}, v{O+2*i}, v{O+2*i+1}")
    a("s_lshl_b32 s15, s14, 15")
    a("s_lshl_b32 s9, s66, 10")
    a("s_add_u32 s15, s15, s9")
    a(f"s_add_u32 s15, s15, {OF}")
    a(f"buffer_store_dwordx4 {vr(P,4)}, v{VL16}, s[48:51], s15 offen sc1")
    a("s_lshl_b32 s15, s14, 7")
    a("s_lshl_b32 s9, s66, 2")
    a("s_add_u32 s15, s15, s9")
    a(f"s_add_u32 s15, s15, {F3}")
    a(f"v_mov_b32 v{VT}, 0")
    a("s_waitcnt vmcnt(0)")
    a("s_mov_b64 exec, 1")
    a(f"buffer_store_dword v{VONE}, v{VT}, s[48:51], s15 offen sc1")
    a("s_mov_b64 exec, -1")
    stamp_flush(a)
    a("s_endpgm")

    a.label(f"{n}_B")
    a("s_and_b32 s12, s3, 3")
    a("s_and_b32 s7, s3, 1")
    a("s_bfe_u32 s8, s3, 0x10001")
    XA = 8
    xaddr(None, XA)
    BACC = [96, 112, 128, 144]; BRAW = [36, 44, 80, 88]
    a("s_mul_i32 s9, s5, 448")
    a("s_mul_i32 s10, s8, 192")
    a("s_add_u32 s11, s9, s10")
    a("v_bfe_u32 v5, v1, 2, 2")
    a("v_lshl_add_u32 v5, v4, 3, v5")
    a("v_mul_u32_u24 v6, 448, v5")
    a("v_bfe_u32 v5, v1, 4, 1")
    a("v_lshl_add_u32 v6, v5, 5, v6")
    a("v_and_b32 v5, 3, v1")
    a("v_lshl_add_u32 v6, v5, 3, v6")
    a("v_add_u32 v6, s10, v6")
    a(f"v_add_u32 v12, {WBASE}, v6")
    a(f"v_add_u32 v13, {WBASE + 4*SLOT}, v6")
    a("v_lshlrev_b32 v14, 4, v4")
    a(f"v_add_u32 v14, {GWB}, v14")
    a("v_lshlrev_b32 v5, 3, v4")
    a("s_waitcnt lgkmcnt(0)")
    srd(a, 48, P_WS, WS_SIZE)
    srd(a, 52, P_B1, 1792 * 2)
    def bias_load():
        for k in range(4):
            for aa in range(4):
                a(f"buffer_load_dwordx2 {vr(BRAW[k]+2*aa,2)}, v5, s[52:55], s11 offen offset:{k*64+aa*16}")
    def bias_unpack(ks):
        for k in ks:
            for aa in range(4):
                for e in range(2):
                    src = BRAW[k] + 2 * aa + e
                    a(f"v_lshlrev_b32 v{BACC[k]+4*aa+2*e}, 16, v{src}")
                    a(f"v_and_b32 v{BACC[k]+4*aa+2*e+1}, 0xffff0000, v{src}")
    GF = [16, 24]; GA = 64
    a("s_cmp_eq_u32 s8, 1")
    a("s_cselect_b64 vcc, -1, 0")
    a("s_lshl_b32 s9, s7, 12")
    for q in range(2):
        a(f"v_cndmask_b32 v{32+q}, v{XA+2*q}, v{XA+2*q+1}, vcc")
        a(f"v_add_u32 v{32+q}, s9, v{32+q}")
    a("s_lshl_b32 s9, s8, 5")
    a("v_add_u32 v14, s9, v14")
    for p in range(17):
        if p < 16:
            a("s_barrier")
            f = GF[p & 1]
            a(f"ds_read_b128 {vr(f,4)}, v14 offset:{p*64}")
            a(f"ds_read_b128 {vr(f+4,4)}, v{32+(p&1)} offset:{(p>>1)*8192}")
        if p > 0:
            f = GF[(p - 1) & 1]
            c = "0" if p == 1 else vr(GA, 16)
            a(f"{MF} {vr(GA,16)}, {vr(f,4)}, {vr(f+4,4)}, {c}")
        if p == 2: bias_load()
        if p == 13: a("s_waitcnt vmcnt(0)"); bias_unpack([0, 1])
        if p == 14: bias_unpack([2, 3])
        if p < 16: a("s_waitcnt lgkmcnt(0)")
    a("s_lshl_b32 s9, s12, 8")
    a("v_lshlrev_b32 v5, 2, v1")
    a(f"v_add_u32 v15, {GRED}, v5")
    a("v_add_u32 v5, s9, v15")
    a("s_lshl_b32 s9, s7, 12")
    for s in range(4): a(f"v_add_u32 v{XA+s}, s9, v{XA+s}")
    a(f"ds_write_b32 v5, v{GA}")
    a("s_waitcnt lgkmcnt(0)")
    def gate_finish():
        for w in range(4): a(f"ds_read_b32 v{160+w}, v15 offset:{w*256}")
        a("s_waitcnt lgkmcnt(0)")
        for rt in range(2):
            a(f"v_add_f32 v{160+rt}, v{160+rt}, v{162+rt}")
            a(f"v_mul_f32 v{160+rt}, {f32hex(-LOG2E)}, v{160+rt}")
            a(f"v_exp_f32 v{160+rt}, v{160+rt}")
            a(f"v_add_f32 v{160+rt}, 1.0, v{160+rt}")
            a(f"v_rcp_f32 v{160+rt}, v{160+rt}")
        a("v_cmp_gt_u32 vcc, 32, v1")
        a("v_cndmask_b32 v5, v161, v160, vcc")
        a("v_lshlrev_b32 v6, 2, v1")
        a("s_lshl_b32 s9, s5, 13")
        a("s_lshl_b32 s11, s4, 8")
        a("s_add_u32 s9, s9, s11")
        a(f"s_add_u32 s9, s9, {G8}")
        a("buffer_store_dword v5, v6, s[48:51], s9 offen sc1")
        a("v_sub_f32 v160, 1.0, v160")
        a("v_sub_f32 v161, 1.0, v161")
    FB = [16, 56]
    def readsB(p, a):
        f = FB[p & 1]; sl = p % NS; pp = p & 15
        wb = 12 if sl < 4 else 13; wo = (sl % 4) * SLOT
        for s in range(2):
            a(f"ds_read_b128 {vr(f+20*s,4)}, v{XA + 2*(pp&1) + s} offset:{(pp>>1)*8192}")
            for k in range(4):
                for t in range(2):
                    a(f"ds_read_b64_tr_b16 {vr(f+20*s+4+4*k+2*t,2)}, v{wb} offset:{wo + s*7168 + t*1792 + k*64}")
    def mfB(p, a):
        f = FB[p & 1]
        for s in range(2):
            for k in range(4):
                a(f"{MF} {vr(BACC[k],16)}, {vr(f+20*s+4+4*k,4)}, {vr(f+20*s,4)}, {vr(BACC[k],16)}")
    for p in range(16, 32):
        if p == ARR: a("s_waitcnt vmcnt(0)")
        a("s_barrier")
        if p == 16: stamp(a, 1)
        r = Cap(); m = Cap()
        readsB(p, r)
        if p > 16:
            mfB(p - 1, m)
            interleave(a, m.l, r.l, 3)
        else:
            for x in r.l[:9]: a(x)
            gate_finish()
            for x in r.l[9:]: a(x)
        a("s_waitcnt lgkmcnt(0)")
    a("s_barrier")
    stamp(a, 2)
    mfB(31, a)
    srd(a, 40, P_W2, 1792 * 512 * 2)
    srd(a, 44, P_WO, 512 * 512 * 2)
    a("v_lshrrev_b32 v5, 3, v1")
    a("v_lshlrev_b32 v8, 10, v5")
    a("v_and_b32 v6, 7, v1")
    a("v_bfe_u32 v7, v1, 4, 1")
    a("v_lshlrev_b32 v7, 2, v7")
    a("v_xor_b32 v7, v6, v7")
    a("v_lshl_add_u32 v8, v7, 4, v8")
    a("v_add_u32 v11, 7168, v8")
    a(f"s_mul_i32 s13, s12, {RSL*2048}")
    a(f"s_add_u32 s13, s13, {RING}")
    a("v_bfe_u32 v5, v1, 2, 2")
    a("v_lshl_add_u32 v6, v4, 2, v5")
    a("v_lshlrev_b32 v6, 7, v6")
    a("v_and_b32 v7, 1, v1")
    a("v_lshl_add_u32 v6, v7, 5, v6")
    a("v_bfe_u32 v7, v1, 4, 1")
    a("v_lshl_add_u32 v6, v7, 4, v6")
    a("v_bfe_u32 v7, v1, 1, 1")
    a("v_lshl_add_u32 v6, v7, 3, v6")
    a("v_add_u32 v6, s13, v6")
    a("v_lshrrev_b32 v5, 1, v5")
    a("v_lshl_add_u32 v9, v5, 6, v6")
    a("v_xor_b32 v5, 1, v5")
    a("v_lshl_add_u32 v10, v5, 6, v6")
    a("v_lshlrev_b32 v5, 4, v1")
    a("s_mul_i32 s14, s12, 458752")
    a("s_lshl_b32 s9, s5, 7")
    a("s_add_u32 s14, s14, s9")
    a("s_lshl_b32 s15, s12, 17")
    a("s_add_u32 s15, s15, s9")
    def wdma(slot, srdn, sreg):
        a(f"s_add_u32 m0, s13, {slot*2048}")
        a(f"buffer_load_dwordx4 v8, s[{srdn}:{srdn+3}], s{sreg} offen lds")
        a(f"buffer_load_dwordx4 v11, s[{srdn}:{srdn+3}], s{sreg} offen offset:1024 lds")
        a(f"s_add_u32 s{sreg}, s{sreg}, 16384")
    a("s_lshl_b32 s62, s7, 16")
    a("s_lshl_b32 s63, s7, 21")
    a("s_lshl_b32 s9, s66, 16")
    a("s_add_u32 s63, s63, s9")
    a(f"s_add_u32 s63, s63, {KF}")
    def kvdma(tile0_expr_shift, tile_base, k4):
        a(f"s_lshl_b32 s61, s8, {tile0_expr_shift + 10}")
        a(f"s_add_u32 s61, s61, {(tile_base + 4*k4)*1024}")
        a("s_add_u32 m0, s61, s62")
        a("s_add_u32 s61, s61, s63")
        for k in range(4):
            a(f"buffer_load_dwordx4 v5, s[48:51], s61 offen offset:{k*1024} sc1 lds")
    def bsignal(off):
        a(f"v_mov_b32 v6, {CNT + off}")
        a("v_mov_b32 v7, 1")
        a("s_mov_b64 exec, 1")
        a("ds_add_u32 v6, v7")
        a("s_mov_b64 exec, -1")
    a(f"s_mov_b32 s60, {f32hex(GELU_C1)}")
    TMP = 16
    a(f"v_mov_b32 v{TMP+16}, {f32hex(GELU_C0)}")
    a("s_lshl_b32 s9, s4, 1")
    a("s_add_u32 s9, s9, s7")
    a("s_mul_i32 s9, s9, 114688")
    a("s_mul_i32 s10, s5, 14336")
    a("s_add_u32 s9, s9, s10")
    a("s_mul_i32 s10, s8, 6144")
    a("s_add_u32 s9, s9, s10")
    a(f"s_add_u32 s9, s9, {HF}")
    a("s_add_u32 s10, s9, 4096")
    a("s_cmp_eq_u32 s8, 1")
    a(f"s_cbranch_scc1 {n}_skip0")
    for k in range(4):
        if k == 1: a.label(f"{n}_skip0")
        dst = 40 + 8 * k
        if k in (1, 2): kvdma(3, 16, k - 1)
        gelu_pack(a, BACC[k], TMP, dst)
        sb = 9 if k < 2 else 10
        a(f"buffer_store_dwordx4 {vr(dst,4)}, v5, s[48:51], s{sb} offen offset:{(k%2)*2048} sc1")
        a(f"buffer_store_dwordx4 {vr(dst+4,4)}, v5, s[48:51], s{sb} offen offset:{(k%2)*2048+1024} sc1")
    stamp(a, 3)
    a("s_setprio 2")
    a("s_lshl_b32 s9, s4, 7")
    a(f"s_add_u32 s9, s9, {F2}")
    a("s_lshl_b32 s10, s5, 4")
    a("s_lshl_b32 s11, s12, 2")
    a("s_add_u32 s10, s10, s11")
    a("v_mov_b32 v6, s10")
    a("v_mov_b32 v7, 1")
    a("s_waitcnt vmcnt(0)")
    a("s_mov_b64 exec, 1")
    a("buffer_store_dword v7, v6, s[48:51], s9 offen sc1")
    a("s_mov_b64 exec, -1")
    bsignal(8)
    for k4 in range(4): kvdma(4, 32, k4)
    for sl in range(RSL): wdma(sl, 40, 14)
    a("s_waitcnt vmcnt(6)")
    bsignal(12)
    a("s_lshl_b32 s10, s5, 5")
    a("s_add_u32 s10, s10, s4")
    a("s_lshl_b32 s10, s10, 7")
    a(f"s_add_u32 s10, s10, {GO + 4}")
    a("v_mov_b32 v6, 0")
    a("s_mov_b64 exec, 1")
    poll(a, f"{n}_pa", "buffer_load_dword v7, v6, s[48:51], s10 offen sc1", 7, 1, sleep=4)
    a("s_mov_b64 exec, -1")
    a("s_lshl_b32 s10, s12, 5")
    a("v_lshl_add_u32 v6, v1, 2, s10")
    a("s_mov_b64 exec, 0xff")
    poll(a, f"{n}_p2", "buffer_load_dword v7, v6, s[48:51], s9 offen sc1", 7, 1, sleep=4)
    a("s_mov_b64 exec, -1")
    stamp(a, 4)
    ACC2 = [96, 112, 128, 144]
    WF = [16, 24]; HD = 6; HB = 32
    a("s_mul_i32 s10, s4, 229376")
    a("s_mul_i32 s11, s12, 28672")
    a("s_add_u32 s10, s10, s11")
    a(f"s_add_u32 s10, s10, {HF}")
    a("s_add_u32 s11, s10, 114688")
    vm = VmTracker()
    def hld(ks):
        for rt in range(2):
            a(f"buffer_load_dwordx4 {vr(HB+8*(ks%HD)+4*rt,4)}, v5, s[48:51], s{10+rt} offen offset:{(ks%4)*1024} sc1"); vm.issue(('h', ks))
        if ks % 4 == 3:
            a("s_add_u32 s10, s10, 4096")
            a("s_add_u32 s11, s11, 4096")
    def trread(ks, dst):
        sl = ks % RSL
        for nt in range(2):
            for t in range(2):
                a(f"ds_read_b64_tr_b16 {vr(dst+4*nt+2*t,2)}, v{9+nt} offset:{sl*2048 + t*1024}")
    for ks in range(HD): hld(ks)
    NK2 = 28
    WOR = 32
    trread(0, WF[0])
    for ks in range(NK2 + 8):
        a("s_waitcnt lgkmcnt(0)")
        nxt = ks + RSL
        if nxt < NK2 + 8:
            wdma(ks % RSL, 40 if nxt < NK2 else 44, 14 if nxt < NK2 else 15); vm.issue(('w', nxt)); vm.issue(('w', nxt))
        if ks + 1 < NK2 + 8:
            w = vm.wait_for(('w', ks + 1))
            if ks < NK2:
                w2 = vm.wait_for(('h', ks))
                if w2 is not None: w = w2
            if w is not None: a(f"s_waitcnt vmcnt({w})")
            if ks + 1 < NK2: trread(ks + 1, WF[(ks + 1) & 1])
        if ks < NK2:
            f = WF[ks & 1]; hb = HB + 8 * (ks % HD)
            for nt in range(2):
                for rt in range(2):
                    c = "0" if ks == 0 else vr(ACC2[2*nt+rt], 16)
                    a(f"{MF} {vr(ACC2[2*nt+rt],16)}, {vr(f+4*nt,4)}, {vr(hb+4*rt,4)}, {c}")
            if ks + HD < NK2: hld(ks + HD)
        if NK2 <= ks + 1 < NK2 + 8: trread(ks + 1, WOR + 8 * (ks + 1 - NK2))
    stamp(a, 5)
    for nt in range(2):
        for rt in range(2):
            for i in range(16): a(f"v_mul_f32 v{ACC2[2*nt+rt]+i}, v{ACC2[2*nt+rt]+i}, v{160+rt}")
    srd(a, 52, P_B2, 1024)
    srd(a, 56, P_OUT, 2048 * 512 * 2)
    a("s_lshl_b32 s9, s5, 7")
    a("s_lshl_b32 s10, s8, 6")
    a("s_add_u32 s61, s9, s10")
    a("v_lshlrev_b32 v6, 5, v4")
    a("buffer_load_dwordx4 v[12:15], v6, s[52:55], s61 offen")
    a("buffer_load_dwordx4 v[164:167], v6, s[52:55], s61 offen offset:16")
    a("v_lshrrev_b32 v6, 3, v1")
    a("v_lshlrev_b32 v6, 7, v6")
    a("v_and_b32 v7, 7, v1")
    a("v_lshl_add_u32 v6, v7, 2, v6")
    a("s_lshl_b32 s9, s4, 8")
    a("s_lshl_b32 s10, s12, 5")
    a("s_add_u32 s9, s9, s10")
    a(f"s_add_u32 s9, s9, {F3}")
    a("s_lshl_b32 s10, s4, 16")
    a("s_lshl_b32 s11, s12, 13")
    a("s_add_u32 s10, s10, s11")
    a(f"s_add_u32 s10, s10, {OF}")
    a("s_lshl_b32 s13, s12, 14")
    a("v_add_u32 v9, s13, v5")
    a("s_barrier")
    stamp(a, 6)
    a("s_mov_b64 exec, 0xffff")
    poll(a, f"{n}_p3", "buffer_load_dword v7, v6, s[48:51], s9 offen sc1", 7, 1, sleep=1)
    a("s_mov_b64 exec, -1")
    stamp(a, 7)
    vm = VmTracker()
    for half in range(2):
        for rt in range(2):
            a(f"s_add_u32 m0, s13, {rt*8192 + half*4096}")
            a(f"s_add_u32 s11, s10, {rt*32768 + half*4096}")
            for k in range(4):
                a(f"buffer_load_dwordx4 v5, s[48:51], s11 offen offset:{k*1024} sc1 lds"); vm.issue(half)
    OFR = [16, 24]
    for half in range(2):
        a(f"s_waitcnt vmcnt({vm.wait_for(half)})")
        for k in range(5):
            if k < 4:
                ks = half * 4 + k
                for rt in range(2):
                    a(f"ds_read_b128 {vr(OFR[k&1]+4*rt,4)}, v9 offset:{rt*8192 + ks*1024}")
            if k > 0:
                a(f"s_waitcnt lgkmcnt({2 if k < 4 else 0})")
                ks = half * 4 + k - 1
                for nt in range(2):
                    for rt in range(2):
                        a(f"{MF} {vr(ACC2[2*nt+rt],16)}, {vr(WOR+8*ks+4*nt,4)}, {vr(OFR[(k-1)&1]+4*rt,4)}, {vr(ACC2[2*nt+rt],16)}")
    stamp(a, 8)
    a("s_lshl_b32 s9, s12, 12")
    a("s_add_u32 s9, s9, 65536")
    a("v_add_u32 v7, s9, v5")
    for q in range(4):
        for k in range(4):
            a(f"ds_write_b128 v7, {vr(ACC2[q]+4*k,4)} offset:{q*16384 + k*1024}")
    a("s_lshl_b32 s9, s12, 14")
    a("s_add_u32 s9, s9, 65536")
    a("v_add_u32 v7, s9, v5")
    a("s_cmp_eq_u32 s7, 1")
    a("s_cselect_b64 vcc, -1, 0")
    a("v_cndmask_b32 v8, v160, v161, vcc")
    for i in range(8):
        src = 12 + i if i < 4 else 164 + i - 4
        a(f"v_lshlrev_b32 v{80+2*i}, 16, v{src}")
        a(f"v_and_b32 v{81+2*i}, 0xffff0000, v{src}")
    a("s_lshl_b32 s10, s4, 1")
    a("s_add_u32 s10, s10, s7")
    a("s_lshl_b32 s10, s10, 15")
    a("s_add_u32 s10, s10, s61")
    a("v_lshlrev_b32 v6, 10, v3")
    a("v_lshl_add_u32 v6, v4, 5, v6")
    a("s_waitcnt lgkmcnt(0)")
    a("s_barrier")
    R = [16, 32, 48, 64]
    for w in range(4):
        for k in range(4):
            a(f"ds_read_b128 {vr(R[w]+4*k,4)}, v7 offset:{w*4096 + k*1024}")
        if w == 2: a("s_waitcnt lgkmcnt(4)")
    for i in range(16): a(f"v_fma_f32 v{R[0]+i}, v{80+i}, v8, v{R[0]+i}")
    for i in range(16): a(f"v_add_f32 v{R[0]+i}, v{R[0]+i}, v{R[1]+i}")
    a("s_waitcnt lgkmcnt(0)")
    for i in range(16): a(f"v_add_f32 v{R[2]+i}, v{R[2]+i}, v{R[3]+i}")
    for i in range(16): a(f"v_add_f32 v{R[0]+i}, v{R[0]+i}, v{R[2]+i}")
    for i in range(8): a(f"v_cvt_pk_bf16_f32 v{R[1]+i}, v{R[0]+2*i}, v{R[0]+2*i+1}")
    a(f"buffer_store_dwordx4 {vr(R[1],4)}, v6, s[56:59], s10 offen")
    a(f"buffer_store_dwordx4 {vr(R[1]+4,4)}, v6, s[56:59], s10 offen offset:16")
    stamp(a, 9)
    stamp_flush(a)
    a.label(f"{n}_end")
    a("s_endpgm")
    return a

def main(out):
    a = gen()
    for p in a.check_all_edges(): print("HAZARD on edge", p, file=sys.stderr)
    print("instrs", len(a.ins), "auto nops", a.nops_added, file=sys.stderr)
    k = NAME + "_kernel"
    txt = f"; @launch grid=(256,1,1) block=(768,1,1) lds={LDS_TOTAL}\n"
    txt += '.amdgcn_target "amdgcn-amd-amdhsa--gfx950"\n.text\n' + kernel_header(k) + a.text()
    txt += '.section .rodata,"a"\n.p2align 6\n' + kernel_desc(k, 168, sgpr=100)
    open(out, "w").write(txt)

if __name__ == "__main__":
    main(sys.argv[1])
```
